```python
import torch

def _softmax(x, axis=-1):
    return torch.softmax(x, dim=axis)
def _gelu(x):
    return torch.nn.functional.gelu(x, approximate="tanh")
def _silu(x):
    return torch.nn.functional.silu(x)
def _sigmoid(x):
    return torch.sigmoid(x)
def _layernorm(x, axis=-1, eps=1e-5):
    m = x.mean(dim=axis, keepdim=True)
    v = x.var(dim=axis, keepdim=True, unbiased=False)
    return (x - m) / torch.sqrt(v + eps)
def _scatter_add(tgt, idx, src, axis=0):
    return tgt.clone().index_add_(axis, idx, src)
def _segment_sum(src, seg, n):
    out = torch.zeros((n,) + src.shape[1:], dtype=src.dtype)
    return out.index_add_(0, seg, src)
def _pad(x, pw):
    flat = tuple(v for pair in reversed(pw) for v in pair)
    return torch.nn.functional.pad(x, flat)

kernel_name = 'concat_heads__mha_block_cached__gqa_block_cached__near_ridge'

def setup_inputs():

    _w = (lambda a: (lambda t: t.to(torch.bfloat16) if t.is_floating_point() else t)(torch.as_tensor(a)))
    def _A_setup():
        B, Sq, D = 16, 160, 640
        H, Sk, Dh = 32, 512, 192
        return {
            "x": _w((lambda *s: torch.randn(*s, dtype=torch.bfloat16) * 0.8)(B, Sq, D)),
            "k_cache": _w((lambda *s: torch.randn(*s, dtype=torch.bfloat16) * 0.8)(B, H, Sk, Dh)),
            "v_cache": _w((lambda *s: torch.randn(*s, dtype=torch.bfloat16) * 0.05)(B, H, Sk, Dh)),
            "wq": _w((lambda *s: torch.randn(*s, dtype=torch.bfloat16) * 0.8)(D, H * Dh) * (D ** -0.5)),
            "wo": _w((lambda *s: torch.randn(*s, dtype=torch.bfloat16) * 0.05)(H * Dh, D) * ((H * Dh) ** -0.5)),
        }
    _A_in = _A_setup()

    def _B_setup():
        B, Sq, D = 16, 160, 640
        Hq, Hkv, Sk, Dh = 32, 32, 512, 192
        assert Hq % Hkv == 0, (Hq, Hkv)
        return {
            "x": _w((lambda *s: torch.randn(*s, dtype=torch.bfloat16) * 0.8)(B, Sq, D)),
            "k_cache": _w((lambda *s: torch.randn(*s, dtype=torch.bfloat16) * 0.8)(B, Hkv, Sk, Dh)),
            "v_cache": _w((lambda *s: torch.randn(*s, dtype=torch.bfloat16) * 0.05)(B, Hkv, Sk, Dh)),
            "wq": _w((lambda *s: torch.randn(*s, dtype=torch.bfloat16) * 0.8)(D, Hq * Dh) * (D ** -0.5)),
            "wo": _w((lambda *s: torch.randn(*s, dtype=torch.bfloat16) * 0.05)(Hq * Dh, D) * ((Hq * Dh) ** -0.5)),
        }
    _B_in = _B_setup()

    return {
        "A_x": _A_in["x"],
        "A_k_cache": _A_in["k_cache"],
        "A_v_cache": _A_in["v_cache"],
        "A_wq": _A_in["wq"],
        "A_wo": _A_in["wo"],
        "B_x": _B_in["x"],
        "B_k_cache": _B_in["k_cache"],
        "B_v_cache": _B_in["v_cache"],
        "B_wq": _B_in["wq"],
        "B_wo": _B_in["wo"],
    }

def reference(A_x, A_k_cache, A_v_cache, A_wq, A_wo, B_x, B_k_cache, B_v_cache, B_wq, B_wo):
    def _A_ref(x, k_cache, v_cache, wq, wo):
        B, Sq, D = x.shape
        H, Dh = 32, 192
        q = (lambda x, *d: x.permute(*d))((x @ wq).reshape(B, Sq, H, Dh), 0, 2, 1, 3)
        scores = torch.einsum("bhqd,bhkd->bhqk", q, k_cache) * (Dh ** -0.5)
        p = _softmax(scores, axis=-1)
        o = torch.einsum("bhqk,bhkd->bhqd", p, v_cache)
        return (lambda x, *d: x.permute(*d))(o, 0, 2, 1, 3).reshape(B, Sq, H * Dh) @ wo

    def _B_ref(x, k_cache, v_cache, wq, wo):
        B, Sq, D = x.shape
        Hq, Dh = 32, 192
        Hkv = k_cache.shape[1]
        rep = Hq // Hkv
        q = (lambda x, *d: x.permute(*d))((x @ wq).reshape(B, Sq, Hq, Dh), 0, 2, 1, 3)
        k = (lambda x, n, axis: torch.repeat_interleave(x, n, dim=axis))(k_cache, rep, axis=1)
        v = (lambda x, n, axis: torch.repeat_interleave(x, n, dim=axis))(v_cache, rep, axis=1)
        scores = torch.einsum("bhqd,bhkd->bhqk", q, k) * (Dh ** -0.5)
        p = _softmax(scores, axis=-1)
        o = torch.einsum("bhqk,bhkd->bhqd", p, v)
        return (lambda x, *d: x.permute(*d))(o, 0, 2, 1, 3).reshape(B, Sq, Hq * Dh) @ wo

    a = _A_ref(A_x, A_k_cache, A_v_cache, A_wq, A_wo)
    b = _B_ref(B_x, B_k_cache, B_v_cache, B_wq, B_wo)
    return torch.concatenate([a, b], axis=-1)
```

```python
import re

_REG_RE = re.compile(r"^(-?)(abs\()?([vsa])(\d+)\)?$")
_RANGE_RE = re.compile(r"^([vsa])\[(\d+):(\d+)\]$")

TRANS = ("v_exp_f32", "v_log_f32", "v_rcp_f32", "v_rsq_f32", "v_sqrt_f32", "v_sin_f32", "v_cos_f32")


def regs_of(tok):
    tok = tok.strip()
    m = _RANGE_RE.match(tok)
    if m:
        return {(m.group(1), i) for i in range(int(m.group(2)), int(m.group(3)) + 1)}
    m = _REG_RE.match(tok)
    if m:
        return {(m.group(3), int(m.group(4)))}
    if tok in ("vcc", "vcc_lo", "vcc_hi"):
        return {("vcc", 0)}
    if tok == "m0":
        return {("m0", 0)}
    if tok in ("exec", "exec_lo", "exec_hi"):
        return {("exec", 0)}
    return set()


def split_ops(s):
    out, depth, cur = [], 0, ""
    for ch in s:
        if ch in "[(":
            depth += 1
        if ch in "])":
            depth -= 1
        if ch == "," and depth == 0:
            out.append(cur.strip())
            cur = ""
        else:
            cur += ch
    if cur.strip():
        out.append(cur.strip())
    return out


class Ins:
    __slots__ = ("text", "op", "kind", "rd", "wr", "srcc", "ab", "ws", "wide_store")

    def __init__(self, text):
        self.text = text
        t = text.split(";")[0].strip()
        parts = t.split(None, 1)
        op = parts[0]
        self.op = op
        rest = parts[1] if len(parts) > 1 else ""
        ops = split_ops(rest)
        toks = []
        for o in ops:
            toks.append(o.split()[0] if o.split() else o)
        mods = rest
        R = [regs_of(x) for x in toks]
        allr = set().union(*R) if R else set()
        self.rd, self.wr, self.srcc, self.ab = set(), set(), set(), set()
        self.ws = 1
        self.wide_store = set()
        if op.startswith("v_mfma"):
            self.kind = "mfma"
            self.wr = R[0]
            self.ab = R[1] | R[2]
            self.srcc = R[3]
            self.rd = self.ab | self.srcc
        elif op.startswith("ds_read") or op.startswith("ds_bpermute") or op.startswith("ds_swizzle"):
            self.kind = "ds"
            self.wr = R[0]
            self.rd = set().union(*R[1:])
        elif op.startswith("ds_write"):
            self.kind = "ds"
            self.rd = allr
        elif op.startswith("buffer_load") or op.startswith("global_load"):
            self.kind = "vmem"
            if re.search(r"\blds\b", mods):
                self.rd = allr | {("m0", 0)}
            else:
                self.wr = R[0]
                self.rd = set().union(*R[1:])
        elif op.startswith("buffer_store") or op.startswith("global_store"):
            self.kind = "vmem"
            self.rd = allr
            if "x4" in op or "x3" in op:
                self.wide_store = R[0] if op.startswith("buffer") else R[1]
        elif op.startswith("buffer_atomic") or op.startswith("global_atomic"):
            self.kind = "vmem"
            self.rd = allr
            if re.search(r"\bsc0\b", mods):
                self.wr = R[0]
        elif op.startswith("buffer_wbl2") or op.startswith("buffer_inv"):
            self.kind = "vmem"
        elif op.startswith("v_permlane"):
            self.kind = "permlane"
            self.rd = allr
            self.wr = allr
        elif op.startswith("v_readfirstlane") or op.startswith("v_readlane"):
            self.kind = "readlane"
            self.wr = R[0]
            self.rd = set().union(*R[1:])
        elif op.startswith("v_cmp"):
            self.kind = "valu"
            self.wr = R[0]
            self.rd = set().union(*R[1:])
        elif op.startswith("v_"):
            base = op.replace("_e32", "").replace("_e64", "")
            self.kind = "trans" if base in TRANS else ("dpp" if "dpp" in op else "valu")
            self.wr = R[0]
            self.rd = set().union(*R[1:]) if len(R) > 1 else set()
            if op.startswith("v_fmac") or op.startswith("v_dot2c"):
                self.rd |= R[0]
            if op.startswith("v_add_co") or op.startswith("v_addc_co") or op.startswith("v_sub_co"):
                self.wr |= R[1]
                self.rd = set().union(*R[2:])
            if op.startswith("v_cndmask") and len(R) == 3:
                self.rd |= {("vcc", 0)}
        elif op == "s_nop":
            self.kind = "nop"
            self.ws = int(toks[0], 0) + 1
        elif op.startswith("s_load") or op.startswith("s_buffer_load"):
            self.kind = "smem"
            self.wr = R[0]
            self.rd = set().union(*R[1:])
        elif op.startswith("s_cmp") or op.startswith("s_bitcmp"):
            self.kind = "salu"
            self.rd = allr
        elif op.startswith("s_cbranch") or op in ("s_branch", "s_barrier", "s_waitcnt", "s_endpgm", "s_setprio", "s_sleep"):
            self.kind = "ctrl"
        elif op.startswith("s_"):
            self.kind = "salu"
            self.wr = R[0] if R else set()
            self.rd = set().union(*R[1:]) if len(R) > 1 else set()
            if "saveexec" in op:
                self.wr |= {("exec", 0)}
        else:
            raise ValueError("unknown op " + text)


VALU_KINDS = ("valu", "trans", "dpp", "permlane", "readlane")


def needed_ws(prev, cur):
    n = 0
    pv = prev.kind in VALU_KINDS
    cv = cur.kind in VALU_KINDS
    pw_v = {r for r in prev.wr if r[0] in ("v", "a")}
    pw_s = {r for r in prev.wr if r[0] in ("s", "vcc")}
    if pv:
        if cur.kind == "mfma" and pw_v & cur.rd:
            n = max(n, 2)
        if cur.kind in ("permlane", "dpp") and pw_v & cur.rd:
            n = max(n, 2)
        if cur.kind == "readlane" and pw_v & cur.rd:
            n = max(n, 1)
        if prev.kind == "trans" and cv and cur.kind != "trans" and pw_v & (cur.rd | cur.wr):
            n = max(n, 1)
        if prev.kind == "trans" and cv and pw_v & cur.rd:
            n = max(n, 1)
        if pw_s:
            if cv and pw_s & cur.rd:
                n = max(n, 4 if cur.kind == "readlane" else 2)
            if cur.kind == "vmem" and pw_s & cur.rd:
                n = max(n, 5)
            if cur.kind in ("salu", "ctrl", "smem") and pw_s & cur.rd:
                n = max(n, 1)
        if ("exec", 0) in prev.wr:
            n = max(n, 5)
    if prev.kind == "mfma":
        if cur.kind == "mfma":
            if prev.wr & cur.ab:
                n = max(n, 8)
            if prev.wr & cur.srcc and prev.wr != cur.srcc:
                n = max(n, 6)
        elif cv or cur.kind in ("ds", "vmem"):
            if prev.wr & (cur.rd | cur.wr):
                n = max(n, 8)
        if cv and prev.srcc & cur.wr:
            n = max(n, 3)
    if prev.kind == "salu" and ("m0", 0) in prev.wr and cur.kind == "vmem" and ("m0", 0) in cur.rd:
        n = max(n, 1)
    if prev.wide_store and prev.wide_store & cur.wr:
        n = max(n, 2)
    return n


class Gen:
    def __init__(self):
        self.out = []
        self.hist = []
        self.lgkm = []
        self.vm = []
        self.nops = 0

    def raw(self, s):
        self.out.append(s)

    def comment(self, s):
        self.out.append("    ; " + s)

    def _emit(self, ins):
        self.out.append(ins)
        self.hist.append(ins)
        if len(self.hist) > 24:
            self.hist.pop(0)

    def _pad(self, ins):
        need = 0
        dist = 0
        for p in reversed(self.hist):
            n = needed_ws(p, ins)
            if n > dist:
                need = max(need, n - dist)
            dist += p.ws
            if dist >= 12:
                break
        while need > 0:
            k = min(need, 16)
            self._emit(Ins("s_nop %d" % (k - 1)))
            self.nops += k
            need -= k

    def I(self, text, tag=None):
        ins = Ins(text)
        touched = ins.rd | ins.wr
        idx = -1
        for i, d in enumerate(self.lgkm):
            if d & touched:
                idx = i
        vidx = -1
        for i, (t, d) in enumerate(self.vm):
            if d & touched:
                vidx = i
        w = []
        if vidx >= 0:
            n = len(self.vm) - 1 - vidx
            n = min(n, 63)
            w.append("vmcnt(%d)" % n)
            self.vm = self.vm[len(self.vm) - n:] if n else []
        if idx >= 0:
            n = len(self.lgkm) - 1 - idx
            n = min(n, 15)
            w.append("lgkmcnt(%d)" % n)
            self.lgkm = self.lgkm[len(self.lgkm) - n:] if n else []
        if w:
            self._emit(Ins("s_waitcnt " + " ".join(w)))
        self._pad(ins)
        self._emit(ins)
        if ins.kind == "ds":
            self.lgkm.append(set(ins.wr))
        elif ins.kind == "vmem":
            self.vm.append((tag, set(ins.wr)))
        return ins

    def wait_lgkm0(self):
        if self.lgkm:
            self._emit(Ins("s_waitcnt lgkmcnt(0)"))
            self.lgkm = []

    def wait_vm_tags(self, tags, also_lgkm0=False):
        idx = -1
        for i, (t, d) in enumerate(self.vm):
            if t in tags:
                idx = i
        w = []
        if idx >= 0:
            n = len(self.vm) - 1 - idx
            assert n <= 63
            w.append("vmcnt(%d)" % n)
            self.vm = self.vm[len(self.vm) - n:] if n else []
        if also_lgkm0 and self.lgkm:
            w.append("lgkmcnt(0)")
            self.lgkm = []
        if w:
            self._emit(Ins("s_waitcnt " + " ".join(w)))

    def wait_all(self):
        self._emit(Ins("s_waitcnt vmcnt(0) lgkmcnt(0)"))
        self.vm = []
        self.lgkm = []

    def barrier(self):
        assert not self.lgkm, "LDS ops outstanding at barrier"
        self._emit(Ins("s_barrier"))

    def label(self, name, flush=True):
        if flush:
            self.safe()
        self.out.append(name + ":")

    def safe(self):
        need = 0
        dist = 0
        for p in reversed(self.hist):
            n = 0
            if p.kind == "mfma":
                n = 8
            elif p.kind in VALU_KINDS:
                n = 5 if any(r[0] in ("s", "vcc", "exec") for r in p.wr) else 2
            elif p.wide_store:
                n = 2
            elif p.kind == "salu" and ("m0", 0) in p.wr:
                n = 1
            if n > dist:
                need = max(need, n - dist)
            dist += p.ws
            if dist >= 12:
                break
        while need > 0:
            k = min(need, 16)
            self._emit(Ins("s_nop %d" % (k - 1)))
            self.nops += k
            need -= k

    def branch(self, text):
        self._emit(Ins("s_nop 0")) if False else None
        need = 0
        dist = 1
        for p in reversed(self.hist):
            n = 0
            if p.kind == "mfma":
                n = 8
            elif p.kind in VALU_KINDS:
                n = 5 if any(r[0] in ("s", "vcc", "exec") for r in p.wr) else 2
            elif p.wide_store:
                n = 2
            elif p.kind == "salu" and ("m0", 0) in p.wr:
                n = 1
            if n > dist:
                need = max(need, n - dist)
            dist += p.ws
            if dist >= 12:
                break
        while need > 0:
            k = min(need, 16)
            self._emit(Ins("s_nop %d" % (k - 1)))
            self.nops += k
            need -= k
        self._emit(Ins(text))

    def text(self):
        lines = []
        for o in self.out:
            if isinstance(o, Ins):
                lines.append("    " + o.text)
            else:
                lines.append(o)
        return "\n".join(lines) + "\n"


def vr(base, n=1):
    return "v%d" % base if n == 1 else "v[%d:%d]" % (base, base + n - 1)


def sr(base, n=1):
    return "s%d" % base if n == 1 else "s[%d:%d]" % (base, base + n - 1)
```

```python
import math
import struct
import sys

sys.path.insert(0, "gen")
from asmlib import Gen, vr, sr

NAME = "concat_heads__mha_block_cached__gqa_block_cached__near_ridge"

X_BYTES = 16 * 160 * 640 * 2
W_BYTES = 640 * 6144 * 2
KV_BYTES = 16 * 32 * 512 * 192 * 2
O_BYTES = 32 * 192 * 10 * 1024
OUT_BYTES = 16 * 160 * 1280 * 2

SLOT = 12288
XBASE = 36864
XSZ = 20480
PB = 61440
QX = 40960

SCALE = math.log2(math.e) / math.sqrt(192.0)


def f32bits(x):
    return struct.unpack("<I", struct.pack("<f", x))[0]


S_X, S_W, S_K, S_V, S_O = 32, 36, 40, 44, 48
S_XOFF, S_WOFF, S_KVOFF, S_OOFF = 52, 53, 54, 55
S_WV, S_QH = 56, 57
S_T0, S_T1, S_T2, S_T3 = 58, 59, 60, 61
S_CNT, S_POSK, S_POSV, S_DK, S_DV = 62, 63, 64, 65, 66
S_KSRC, S_VSRC = 67, 68
S_PDK, S_PDV = 69, 70
S_SCALE = 72


def mfma(g, d, a, b, c=None):
    cs = vr(d, 4) if c is None else (c if isinstance(c, str) else vr(c, 4))
    g.I("v_mfma_f32_16x16x32_bf16 %s, %s, %s, %s" % (vr(d, 4), vr(a, 4), vr(b, 4), cs))


def load_ptrs_and_srds(g):
    g.I("s_load_dwordx16 s[8:23], s[0:1], 0")
    g.I("s_load_dwordx4 s[24:27], s[0:1], 64")
    g.I("s_load_dwordx2 s[28:29], s[0:1], 96")
    g.I("s_load_dwordx2 s[30:31], s[0:1], 80")
    g.I("s_waitcnt lgkmcnt(0)")


def srd(g, d, lo, hi, nbytes):
    g.I("s_mov_b32 %s, %s" % (sr(d), sr(lo)))
    g.I("s_and_b32 %s, %s, 0xffff" % (sr(d + 1), sr(hi)))
    g.I("s_mov_b32 %s, %d" % (sr(d + 2), nbytes))
    g.I("s_mov_b32 %s, 0x00020000" % sr(d + 3))


def srd_sel(g, d, a, b, nbytes):
    g.I("s_cselect_b32 %s, %s, %s" % (sr(d), sr(b), sr(a)))
    g.I("s_cselect_b32 %s, %s, %s" % (sr(d + 1), sr(b + 1), sr(a + 1)))
    g.I("s_mov_b32 %s, %d" % (sr(d + 2), nbytes))
    g.I("s_mov_b32 %s, 0x00020000" % sr(d + 3))


def emit_rho(g, dst_rho, dst_lc, l3, k, tmp):
    g.I("v_add_u32 %s, %d, %s" % (vr(tmp), 8 * k, vr(l3)))
    g.I("v_mul_u32_u24 %s, 43, %s" % (vr(dst_rho), vr(tmp)))
    g.I("v_lshrrev_b32 %s, 7, %s" % (vr(dst_rho), vr(dst_rho)))
    g.I("v_mul_u32_u24 %s, 3, %s" % (vr(dst_lc), vr(dst_rho)))
    g.I("v_sub_u32 %s, %s, %s" % (vr(dst_lc), vr(tmp), vr(dst_lc)))


def emit_aV(g, dst, e, lane, t0, t1, t2):
    g.I("v_lshrrev_b32 %s, 2, %s" % (vr(t0), vr(lane)))
    g.I("v_mul_u32_u24 %s, 384, %s" % (vr(dst), vr(t0)))
    g.I("v_and_b32 %s, 7, %s" % (vr(t0), vr(t0)))
    g.I("v_bfe_u32 %s, %s, 1, 1" % (vr(t1), vr(lane)))
    g.I("v_add_u32 %s, %d, %s" % (vr(t1), 2 * e, vr(t1)))
    g.I("v_xor_b32 %s, %s, %s" % (vr(t1), vr(t1), vr(t0)))
    g.I("v_lshl_add_u32 %s, %s, 4, %s" % (vr(dst), vr(t1), vr(dst)))
    g.I("v_and_b32 %s, 1, %s" % (vr(t2), vr(lane)))
    g.I("v_lshl_add_u32 %s, %s, 3, %s" % (vr(dst), vr(t2), vr(dst)))


def emit_aRow(g, dst, e, rowbytes, lane, t0, t1):
    g.I("v_and_b32 %s, 15, %s" % (vr(t0), vr(lane)))
    g.I("v_mul_u32_u24 %s, %d, %s" % (vr(dst), rowbytes, vr(t0)))
    g.I("v_lshrrev_b32 %s, 4, %s" % (vr(t0), vr(lane)))
    g.I("v_add_u32 %s, %d, %s" % (vr(t0), 4 * e, vr(t0)))
    g.I("v_and_b32 %s, 7, %s" % (vr(t1), vr(lane)))
    g.I("v_xor_b32 %s, %s, %s" % (vr(t0), vr(t0), vr(t1)))
    g.I("v_lshl_add_u32 %s, %s, 4, %s" % (vr(dst), vr(t0), vr(dst)))


def qp_step(g, t, dts, ACC, BF, AF, aV, aX, fillers):
    wslot = ((t + 1) % 3) * SLOT
    xb = ((t >> 1) & 1) * XSZ
    s = t & 1
    nbuf = len(AF)
    for qt in range(5):
        g.I("ds_read_b128 %s, %s offset:%d" % (vr(BF + 4 * qt, 4), vr(aX[s]), xb + qt * 2048))

    def rdA(i):
        dt = dts[i]
        b = AF[i % nbuf]
        for ih in range(2):
            g.I("ds_read_b64_tr_b16 %s, %s offset:%d" % (vr(b + 2 * ih, 2), vr(aV[dt & 3]), wslot + ih * 6144 + (dt >> 2) * 128))

    pre = min(nbuf, len(dts), 4)
    for i in range(pre):
        rdA(i)
    fillers = list(fillers)
    per = -(-len(fillers) // len(dts)) if fillers else 0
    for i, dt in enumerate(dts):
        for qt in range(5):
            mfma(g, ACC(i, qt), AF[i % nbuf], BF + 4 * qt, "0" if t == 0 else None)
        if i + pre < len(dts):
            rdA(i + pre)
        for _ in range(per):
            if fillers:
                fillers.pop(0)()
    assert not fillers


def q_finalize(g, T0, T1, F):
    for r in range(0, 4, 2):
        g.I("v_pk_mul_f32 %s, %s, %s" % (vr(T0 + r, 2), vr(T0 + r, 2), sr(S_SCALE, 2)))
        g.I("v_pk_mul_f32 %s, %s, %s" % (vr(T1 + r, 2), vr(T1 + r, 2), sr(S_SCALE, 2)))
    g.I("v_cvt_pk_bf16_f32 %s, %s, %s" % (vr(F), vr(T0), vr(T0 + 1)))
    g.I("v_cvt_pk_bf16_f32 %s, %s, %s" % (vr(F + 1), vr(T0 + 2), vr(T0 + 3)))
    g.I("v_cvt_pk_bf16_f32 %s, %s, %s" % (vr(F + 2), vr(T1), vr(T1 + 1)))
    g.I("v_cvt_pk_bf16_f32 %s, %s, %s" % (vr(F + 3), vr(T1 + 2), vr(T1 + 3)))


def q_swaps(g, F):
    g.I("v_permlane32_swap_b32 %s, %s" % (vr(F), vr(F + 2)))
    g.I("v_permlane32_swap_b32 %s, %s" % (vr(F + 1), vr(F + 3)))
    g.I("v_permlane16_swap_b32 %s, %s" % (vr(F), vr(F + 2)))
    g.I("v_permlane16_swap_b32 %s, %s" % (vr(F + 1), vr(F + 3)))


def ring_advance(g, pos, delta):
    g.I("s_add_u32 %s, %s, %d" % (sr(S_T0), sr(pos), 2 * SLOT))
    g.I("s_cmp_ge_u32 %s, %d" % (sr(S_T0), 5 * SLOT))
    if delta is not None:
        g.I("s_cselect_b32 %s, %d, 0" % (sr(S_T1), 5 * SLOT))
        g.I("s_sub_u32 %s, %d, %s" % (sr(delta), 2 * SLOT, sr(S_T1)))
        g.I("s_add_u32 %s, %s, %s" % (sr(pos), sr(pos), sr(delta)))
    else:
        g.I("s_cselect_b32 %s, %d, 0" % (sr(S_T1), 5 * SLOT))
        g.I("s_sub_u32 %s, %s, %s" % (sr(pos), sr(S_T0), sr(S_T1)))


def o_store(g, O, npairs, p0, invl, voff, tmp_s):
    for p in range(npairs):
        for qt in range(5):
            T0, T1 = O(2 * p, qt), O(2 * p + 1, qt)
            for r in range(4):
                g.I("v_mul_f32 %s, %s, %s" % (vr(T0 + r), vr(T0 + r), vr(invl + qt)))
                g.I("v_mul_f32 %s, %s, %s" % (vr(T1 + r), vr(T1 + r), vr(invl + qt)))
            g.I("v_cvt_pk_bf16_f32 %s, %s, %s" % (vr(T0), vr(T0), vr(T0 + 1)))
            g.I("v_cvt_pk_bf16_f32 %s, %s, %s" % (vr(T0 + 1), vr(T0 + 2), vr(T0 + 3)))
            g.I("v_cvt_pk_bf16_f32 %s, %s, %s" % (vr(T0 + 2), vr(T1), vr(T1 + 1)))
            g.I("v_cvt_pk_bf16_f32 %s, %s, %s" % (vr(T0 + 3), vr(T1 + 2), vr(T1 + 3)))
            off = (p0 + p) * 10240 + qt * 1024
            g.I("s_add_u32 %s, %s, %d" % (sr(tmp_s), sr(S_OOFF), off))
            g.I("buffer_store_dwordx4 %s, %s, %s, %s offen" % (vr(T0, 4), vr(voff), sr(S_O, 4), sr(tmp_s)))


def gen_sw(g):
    Q = lambda ks, qt: 20 * ks + 4 * qt
    S = lambda kt, qt: 120 + 20 * kt + 4 * qt
    O2 = lambda d, qt: 160 + 20 * d + 4 * qt
    NM = lambda qt: 200 + 4 * qt
    L = 220
    AFa = [228, 232, 236, 240]
    aK = [244, 245]
    aV23 = [246, 247]
    aPw = 248
    T = [249, 250, 251, 252, 253, 254, 255]
    LANE = 225
    ACC = lambda i, qt: 120 + 20 * i + 4 * qt
    BF = 40
    AFq = [80, 84, 88, 92]
    voffW = [200, 201, 202]
    voffX = [203, 204, 205, 206]
    aX = [207, 208]
    aVq = [209, 210, 246, 247]

    g.I("v_and_b32 %s, 63, v0" % vr(LANE))
    l3, l7 = T[5], T[6]
    g.I("v_lshrrev_b32 %s, 3, %s" % (vr(l3), vr(LANE)))
    g.I("v_and_b32 %s, 7, %s" % (vr(l7), vr(LANE)))
    for k in range(3):
        rho, lc = T[0], T[1]
        emit_rho(g, rho, lc, l3, k, T[2])
        d = voffW[k]
        g.I("v_lshrrev_b32 %s, 2, %s" % (vr(T[2]), vr(rho)))
        g.I("v_lshlrev_b32 %s, 3, %s" % (vr(T[2]), vr(T[2])))
        g.I("v_and_b32 %s, 3, %s" % (vr(T[3]), vr(rho)))
        g.I("v_add_u32 %s, %s, %s" % (vr(T[2]), vr(T[2]), vr(T[3])))
        g.I("v_mul_u32_u24 %s, 12288, %s" % (vr(d), vr(T[2])))
        g.I("v_lshl_add_u32 %s, %s, 7, %s" % (vr(d), vr(lc), vr(d)))
        g.I("v_xor_b32 %s, %s, %s" % (vr(T[2]), vr(l7), vr(rho)))
        g.I("v_lshl_add_u32 %s, %s, 4, %s" % (vr(d), vr(T[2]), vr(d)))
        if k:
            g.I("v_subrev_u32 %s, %d, %s" % (vr(d), 1024 * k, vr(d)))
    g.I("v_mul_u32_u24 %s, 1280, %s" % (vr(voffX[0]), vr(l3)))
    g.I("v_xor_b32 %s, %s, %s" % (vr(T[2]), vr(l7), vr(l3)))
    g.I("v_lshl_add_u32 %s, %s, 4, %s" % (vr(voffX[0]), vr(T[2]), vr(voffX[0])))
    for k in range(1, 4):
        g.I("v_add_u32 %s, %d, %s" % (vr(voffX[k]), 9216 * k, vr(voffX[0])))

    S_WSRC, S_XSRC, S_WDST, S_XDST = 74, 75, 76, 77
    g.I("s_mul_i32 %s, %s, %d" % (sr(S_WSRC), sr(S_QH), 4 * 12288))
    g.I("s_add_u32 %s, %s, %s" % (sr(S_WSRC), sr(S_WSRC), sr(S_WOFF)))
    g.I("s_mul_i32 %s, %s, %d" % (sr(S_XSRC), sr(S_QH), 80 * 1280))
    g.I("s_add_u32 %s, %s, %s" % (sr(S_XSRC), sr(S_XSRC), sr(S_XOFF)))
    g.I("s_mul_i32 %s, %s, %d" % (sr(S_WDST), sr(S_QH), 6144))
    g.I("s_mul_i32 %s, %s, %d" % (sr(S_XDST), sr(S_QH), 10240))

    def dmaW(t):
        fl = []
        slot = ((t + 1) % 3) * SLOT
        for gam in range(2):
            def f(gam=gam):
                g.I("s_add_u32 m0, %s, %d" % (sr(S_WDST), slot + 3072 * gam))
                g.I("s_add_u32 %s, %s, %d" % (sr(S_T0), sr(S_WSRC), (32 * t + 16 * gam) * 12288))
                for k in range(3):
                    g.I("buffer_load_dwordx4 %s, %s, %s offen offset:%d lds" % (vr(voffW[k]), sr(S_W, 4), sr(S_T0), 1024 * k), tag=("W", t))
            fl.append(f)
        return fl

    def dmaX(u):
        fl = []
        xb = XBASE + (u & 1) * XSZ
        for grp, n in ((0, 4), (1, 4), (2, 2)):
            def f(grp=grp, n=n):
                g.I("s_add_u32 m0, %s, %d" % (sr(S_XDST), xb + 4096 * grp))
                g.I("s_add_u32 %s, %s, %d" % (sr(S_T0), sr(S_XSRC), 32 * grp * 1280 + u * 128))
                for k in range(n):
                    g.I("buffer_load_dwordx4 %s, %s, %s offen offset:%d lds" % (vr(voffX[k]), sr(S_X, 4), sr(S_T0), 1024 * k), tag=("X", u))
            fl.append(f)
        return fl

    for f in dmaW(0) + dmaX(0) + dmaW(1):
        f()
    for e in range(4):
        emit_aV(g, aVq[e], e, LANE, T[0], T[1], T[2])
    for s in range(2):
        emit_aRow(g, aX[s], s, 128, LANE, T[0], T[1])
        g.I("v_add_u32 %s, %s, %s" % (vr(aX[s]), sr(S_XDST), vr(aX[s])))
        g.I("v_add_u32 %s, %d, %s" % (vr(aX[s]), XBASE, vr(aX[s])))
    for e in range(2):
        emit_aRow(g, aK[e], e, 384, LANE, T[0], T[1])
    g.I("v_lshlrev_b32 %s, 4, %s" % (vr(aPw), vr(LANE)))
    g.I("v_add_u32 %s, %s, %s" % (vr(aPw), sr(S_XDST), vr(aPw)))
    g.wait_vm_tags({("W", 0), ("X", 0)})
    g.barrier()
    for t in range(20):
        fl = []
        if t + 2 <= 19:
            fl += dmaW(t + 2)
        if t % 2 == 0 and (t >> 1) + 1 <= 9:
            fl += dmaX((t >> 1) + 1)
        qp_step(g, t, [0, 1, 2, 3], ACC, BF, AFq, aVq, aX, fl)
        g.wait_vm_tags({("W", t + 1), ("X", (t + 1) >> 1)}, also_lgkm0=True)
        g.barrier()
    for ks in range(2):
        for qt in range(5):
            q_finalize(g, ACC(2 * ks, qt), ACC(2 * ks + 1, qt), Q(ks, qt))
    for ks in range(2):
        for qt in range(5):
            q_swaps(g, Q(ks, qt))
    g.barrier()
    g.I("v_add_u32 %s, %s, %s" % (vr(T[0]), sr(S_XDST), vr(aPw)))
    for ks in range(2, 6):
        for qt in range(5):
            g.I("ds_read_b128 %s, %s offset:%d" % (vr(Q(ks, qt), 4), vr(T[0]), QX + ((ks - 2) * 5 + qt) * 1024))
    for i in range(40):
        g.I("v_mov_b32 %s, 0" % vr(160 + i))
    for qt in range(5):
        g.I("v_mov_b32 %s, 0" % vr(L + qt))
    g.I("v_add_u32 %s, %d, %s" % (vr(aPw), PB, vr(aPw)))
    for e in range(2):
        g.I("v_add_u32 %s, %d, %s" % (vr(aV23[e]), 2 * SLOT, vr(aV23[e])))
    g.wait_lgkm0()
    g.barrier()

    def qk(first, fillers_kt1):
        seq = [(kt, ks) for kt in range(2) for ks in range(6)]
        nb = len(AFa)

        def rd(i):
            kt, ks = seq[i]
            g.I("ds_read_b128 %s, %s offset:%d" % (vr(AFa[i % nb], 4), vr(aK[ks & 1]), kt * 6144 + (ks >> 1) * 128))
        return seq, nb, rd

    def expsum(kt, qt):
        ops = []
        for r in range(4):
            ops.append("v_exp_f32 %s, %s" % (vr(S(kt, qt) + r), vr(S(kt, qt) + r)))
        for r in range(4):
            ops.append("v_add_f32 %s, %s, %s" % (vr(L + qt), vr(L + qt), vr(S(kt, qt) + r)))
        b = S(0, qt) + 2 * kt
        ops.append("v_cvt_pk_bf16_f32 %s, %s, %s" % (vr(b), vr(S(kt, qt)), vr(S(kt, qt) + 1)))
        ops.append("v_cvt_pk_bf16_f32 %s, %s, %s" % (vr(b + 1), vr(S(kt, qt) + 2), vr(S(kt, qt) + 3)))
        return ops

    def pv_share_reads():
        for i, dt in enumerate((10, 11)):
            for ih in range(2):
                g.I("ds_read_b64_tr_b16 %s, %s offset:%d" % (vr(AFa[2 + i] + 2 * ih, 2), vr(aV23[i]), ih * 6144 + (dt >> 2) * 128))

    def pv_share_mfma():
        for i in range(2):
            for qt in range(5):
                mfma(g, O2(i, qt), AFa[2 + i], S(0, qt))

    def block(first, with_pv):
        seq, nb, rd = qk(first, None)
        if with_pv:
            pv_share_reads()
            rd(0)
            rd(1)
            pv_share_mfma()
            rd(2)
            rd(3)
        else:
            for i in range(4):
                rd(i)
        fill = []
        if not first:
            for qt in range(5):
                fill += expsum(0, qt)
        for i, (kt, ks) in enumerate(seq):
            for qt in range(5):
                c = None
                if ks == 0:
                    c = "0" if first else NM(qt)
                mfma(g, S(kt, qt), AFa[i % nb], Q(ks, qt), c)
                if kt == 1 and i >= 7 and fill:
                    g.I(fill.pop(0))
                    if fill:
                        g.I(fill.pop(0))
            if i + 4 < len(seq):
                rd(i + 4)
        if first:
            for qt in range(5):
                m, t1 = T[0], T[1]
                g.I("v_max3_f32 %s, %s, %s, %s" % (vr(m), vr(S(0, qt)), vr(S(0, qt) + 1), vr(S(0, qt) + 2)))
                g.I("v_max3_f32 %s, %s, %s, %s" % (vr(m), vr(m), vr(S(0, qt) + 3), vr(S(1, qt))))
                g.I("v_max3_f32 %s, %s, %s, %s" % (vr(m), vr(m), vr(S(1, qt) + 1), vr(S(1, qt) + 2)))
                g.I("v_max_f32 %s, %s, %s" % (vr(m), vr(m), vr(S(1, qt) + 3)))
                g.I("v_mov_b32 %s, %s" % (vr(t1), vr(m)))
                g.I("v_permlane32_swap_b32 %s, %s" % (vr(m), vr(t1)))
                g.I("v_max_f32 %s, %s, %s" % (vr(m), vr(m), vr(t1)))
                g.I("v_mov_b32 %s, %s" % (vr(t1), vr(m)))
                g.I("v_permlane16_swap_b32 %s, %s" % (vr(m), vr(t1)))
                g.I("v_max_f32 %s, %s, %s" % (vr(m), vr(m), vr(t1)))
                for r in range(4):
                    g.I("v_sub_f32 %s, 0, %s" % (vr(NM(qt) + r), vr(m)))
                for kt in range(2):
                    for r in range(4):
                        g.I("v_sub_f32 %s, %s, %s" % (vr(S(kt, qt) + r), vr(S(kt, qt) + r), vr(m)))
            for qt in range(5):
                fill += expsum(0, qt)
        for o in fill:
            g.I(o)
        for qt in range(5):
            for o in expsum(1, qt):
                g.I(o)
            g.I("ds_write_b128 %s, %s offset:%d" % (vr(aPw), vr(S(0, qt), 4), qt * 1024))

    block(True, False)
    for e in range(2):
        g.I("v_add_u32 %s, %d, %s" % (vr(aK[e]), SLOT, vr(aK[e])))
    g.I("v_xor_b32 %s, %d, %s" % (vr(aPw), 5120 ^ 0, vr(aPw))) if False else None
    g.I("s_mov_b32 %s, %d" % (sr(S_POSK), SLOT))
    g.I("s_mov_b32 %s, %d" % (sr(S_POSV), 2 * SLOT))
    g.I("s_mov_b32 %s, %d" % (sr(S_T3), 5120))
    g.I("v_add_u32 %s, %s, %s" % (vr(aPw), sr(S_T3), vr(aPw)))
    g.I("s_mov_b32 %s, 0" % sr(S_CNT))
    g.wait_lgkm0()
    g.barrier()
    g.label("L_sw_loop")
    block(False, True)
    ring_advance(g, S_POSK, S_DK)
    ring_advance(g, S_POSV, S_DV)
    g.I("s_sub_u32 %s, 0, %s" % (sr(S_T3), sr(S_T3)))
    for e in range(2):
        g.I("v_add_u32 %s, %s, %s" % (vr(aK[e]), sr(S_DK), vr(aK[e])))
        g.I("v_add_u32 %s, %s, %s" % (vr(aV23[e]), sr(S_DV), vr(aV23[e])))
    g.I("v_add_u32 %s, %s, %s" % (vr(aPw), sr(S_T3), vr(aPw)))
    g.I("s_add_u32 %s, %s, 1" % (sr(S_CNT), sr(S_CNT)))
    g.wait_lgkm0()
    g.barrier()
    g.I("s_cmp_lt_u32 %s, 15" % sr(S_CNT))
    g.branch("s_cbranch_scc1 L_sw_loop")
    pv_share_reads()
    for qt in range(5):
        l, t1 = L + qt, T[1]
        g.I("v_mov_b32 %s, %s" % (vr(t1), vr(l)))
        g.I("v_permlane32_swap_b32 %s, %s" % (vr(l), vr(t1)))
        g.I("v_add_f32 %s, %s, %s" % (vr(l), vr(l), vr(t1)))
        g.I("v_mov_b32 %s, %s" % (vr(t1), vr(l)))
        g.I("v_permlane16_swap_b32 %s, %s" % (vr(l), vr(t1)))
        g.I("v_add_f32 %s, %s, %s" % (vr(l), vr(l), vr(t1)))
        g.I("v_rcp_f32 %s, %s" % (vr(l), vr(l)))
    pv_share_mfma()
    for qt in range(5):
        g.I("ds_write_b32 %s, %s offset:%d" % (vr(aPw), vr(L + qt), qt * 1024))
    g.wait_lgkm0()
    g.barrier()
    g.I("v_lshlrev_b32 %s, 4, %s" % (vr(T[0]), vr(LANE)))
    g.I("s_mul_i32 %s, %s, 5120" % (sr(S_T1), sr(S_QH)))
    g.I("v_add_u32 %s, %s, %s" % (vr(T[0]), sr(S_T1), vr(T[0])))
    o_store(g, O2, 1, 5, L, T[0], S_T0)
    g.I("s_endpgm")


def gen_pw(g):
    O = lambda dt, qt: 20 * dt + 4 * qt
    P = lambda qt: 200 + 4 * qt
    AFa = [220, 224, 228, 232]
    aV = [236, 237, 238, 239]
    aPr = 240
    voffKV = [241, 242, 243]
    aX = [244, 245]
    LANE = 246
    T = [247, 248, 249, 250, 251, 252, 253, 254, 255]
    ACC = lambda i, qt: 20 * i + 4 * qt
    BF = 160
    AFq = [200, 204, 208, 212, 216, 220]

    g.I("v_and_b32 %s, 63, v0" % vr(LANE))
    l3, l7 = T[5], T[6]
    g.I("v_lshrrev_b32 %s, 3, %s" % (vr(l3), vr(LANE)))
    g.I("v_and_b32 %s, 7, %s" % (vr(l7), vr(LANE)))
    for k in range(3):
        rho, lc = T[0], T[1]
        emit_rho(g, rho, lc, l3, k, T[2])
        d = voffKV[k]
        g.I("v_lshlrev_b32 %s, 7, %s" % (vr(d), vr(l3)))
        g.I("v_xor_b32 %s, %s, %s" % (vr(T[2]), vr(l7), vr(rho)))
        g.I("v_lshl_add_u32 %s, %s, 4, %s" % (vr(d), vr(T[2]), vr(d)))
    S_HALF, S_XD = 74, 75
    g.I("s_mul_i32 %s, %s, 6144" % (sr(S_HALF), sr(S_QH)))
    g.I("s_mul_i32 %s, %s, 10240" % (sr(S_XD), sr(S_QH)))
    g.I("s_add_u32 %s, %s, %s" % (sr(S_KSRC), sr(S_KVOFF), sr(S_HALF)))
    g.I("s_mov_b32 %s, %s" % (sr(S_VSRC), sr(S_KSRC)))
    for e in range(4):
        emit_aV(g, aV[e], e, LANE, T[0], T[1], T[2])
    for s in range(2):
        emit_aRow(g, aX[s], s, 128, LANE, T[0], T[1])
        g.I("v_add_u32 %s, %s, %s" % (vr(aX[s]), sr(S_XD), vr(aX[s])))
        g.I("v_add_u32 %s, %d, %s" % (vr(aX[s]), XBASE, vr(aX[s])))
    g.I("v_lshlrev_b32 %s, 4, %s" % (vr(aPr), vr(LANE)))
    g.I("v_add_u32 %s, %s, %s" % (vr(aPr), sr(S_XD), vr(aPr)))

    def dmaKV(which, slot, tag):
        srdr = S_K if which == "K" else S_V
        src = S_KSRC if which == "K" else S_VSRC
        fl = []
        for gam in range(2):
            def f(gam=gam):
                if isinstance(slot, int):
                    g.I("s_add_u32 m0, %s, %d" % (sr(S_HALF), slot + 3072 * gam))
                else:
                    if gam == 0:
                        g.I("s_add_u32 m0, %s, %s" % (sr(S_HALF), sr(slot[1])))
                    else:
                        g.I("s_add_u32 m0, m0, 3072")
                if gam == 1:
                    g.I("s_add_u32 %s, %s, 3072" % (sr(src), sr(src)))
                for k in range(3):
                    g.I("buffer_load_dwordx4 %s, %s, %s offen offset:%d nt lds" % (vr(voffKV[k]), sr(srdr, 4), sr(src), 1024 * k), tag=tag)
                if gam == 1:
                    g.I("s_add_u32 %s, %s, %d" % (sr(src), sr(src), SLOT - 3072))
            fl.append(f)
        return fl

    g.barrier()
    for t in range(20):
        fl = []
        if t == 18:
            fl += dmaKV("K", 0, ("K", 0))
        if t == 19:
            fl += dmaKV("K", SLOT, ("K", 1))
        qp_step(g, t, list(range(4, 12)), ACC, BF, AFq, aV, aX, fl)
        g.wait_lgkm0()
        g.barrier()
    for f in dmaKV("V", 2 * SLOT, ("V", 0)):
        f()
    g.I("v_add_u32 %s, %s, %s" % (vr(T[0]), sr(S_XD), vr(aPr)))
    for p in range(4):
        for qt in range(5):
            F = ACC(2 * p, qt)
            q_finalize(g, F, ACC(2 * p + 1, qt), F)
        for qt in range(5):
            q_swaps(g, ACC(2 * p, qt))
        for qt in range(5):
            g.I("ds_write_b128 %s, %s offset:%d" % (vr(T[0]), vr(ACC(2 * p, qt), 4), QX + (p * 5 + qt) * 1024))
    g.wait_lgkm0()
    g.barrier()
    g.I("v_add_u32 %s, %d, %s" % (vr(aPr), PB, vr(aPr)))
    for e in range(4):
        g.I("v_add_u32 %s, %d, %s" % (vr(aV[e]), 2 * SLOT, vr(aV[e])))
    g.wait_vm_tags({("K", 0)})
    g.barrier()
    for f in dmaKV("K", 3 * SLOT, ("K", 2)) + dmaKV("V", 4 * SLOT, ("V", 1)):
        f()
    g.wait_vm_tags({("K", 1), ("V", 0)})
    g.I("s_mov_b32 %s, %d" % (sr(S_POSV), 2 * SLOT))
    g.I("s_mov_b32 %s, %d" % (sr(S_T3), 5120))
    g.barrier()

    def interval(first, fl):
        for qt in range(5):
            g.I("ds_read_b128 %s, %s offset:%d" % (vr(P(qt), 4), vr(aPr), qt * 1024))
        nb = len(AFa)

        def rd(dt):
            for ih in range(2):
                g.I("ds_read_b64_tr_b16 %s, %s offset:%d" % (vr(AFa[dt % nb] + 2 * ih, 2), vr(aV[dt & 3]), ih * 6144 + (dt >> 2) * 128))
        for dt in range(nb):
            rd(dt)
        fl = list(fl)
        for dt in range(10):
            for qt in range(5):
                mfma(g, O(dt, qt), AFa[dt % nb], P(qt), "0" if first else None)
            if dt + nb < 10:
                rd(dt + nb)
            if fl:
                fl.pop(0)()
        assert not fl
        ring_advance(g, S_POSV, S_DV)
        for e in range(4):
            g.I("v_add_u32 %s, %s, %s" % (vr(aV[e]), sr(S_DV), vr(aV[e])))
        g.I("v_add_u32 %s, %s, %s" % (vr(aPr), sr(S_T3), vr(aPr)))
        g.I("s_sub_u32 %s, 0, %s" % (sr(S_T3), sr(S_T3)))

    interval(True, dmaKV("K", 0, ("K", 3)))
    g.wait_vm_tags({("K", 2), ("V", 1)}, also_lgkm0=True)
    g.I("s_mov_b32 %s, %d" % (sr(S_PDV), 1 * SLOT))
    g.I("s_mov_b32 %s, %d" % (sr(S_PDK), 2 * SLOT))
    g.I("s_mov_b32 %s, 1" % sr(S_CNT))
    g.barrier()
    entry_q = [t for t, d in g.vm]
    assert entry_q == [("K", 3)] * 6, entry_q
    g.vm = [(("Kn", 0), set()) for _ in range(6)]
    g.label("L_pw_loop")
    interval(False, dmaKV("V", ("s", S_PDV), ("Vn", 1)) + dmaKV("K", ("s", S_PDK), ("Kn", 1)))
    ring_advance(g, S_PDV, None)
    ring_advance(g, S_PDK, None)
    g.I("s_add_u32 %s, %s, 1" % (sr(S_CNT), sr(S_CNT)))
    g.wait_vm_tags({("Kn", 0), ("Vn", 1)}, also_lgkm0=True)
    assert [t for t, d in g.vm] == [("Kn", 1)] * 6
    g.vm = [(("Kn", 0), set()) for _ in range(6)]
    g.barrier()
    g.I("s_cmp_lt_u32 %s, 13" % sr(S_CNT))
    g.branch("s_cbranch_scc1 L_pw_loop")
    for j in (13, 14):
        interval(False, dmaKV("V", ("s", S_PDV), ("V", j + 1)))
        ring_advance(g, S_PDV, None)
        g.wait_vm_tags({("Kn", 0), ("V", j + 1)}, also_lgkm0=True)
        g.barrier()
    interval(False, [])
    g.wait_lgkm0()
    g.barrier()
    IL = 200
    for qt in range(5):
        g.I("ds_read_b32 %s, %s offset:%d" % (vr(IL + qt), vr(aPr), qt * 1024))
    g.I("v_lshlrev_b32 %s, 4, %s" % (vr(T[0]), vr(LANE)))
    g.I("s_mul_i32 %s, %s, 5120" % (sr(S_T1), sr(S_QH)))
    g.I("v_add_u32 %s, %s, %s" % (vr(T[0]), sr(S_T1), vr(T[0])))
    o_store(g, O, 5, 0, IL, T[0], S_T0)
    g.I("s_endpgm")


def gen_qa(g):
    g.raw(".globl qa_kernel\n.p2align 8\n.type qa_kernel,@function\nqa_kernel:")
    g.I("s_cmp_ge_u32 s2, 1024")
    g.branch("s_cbranch_scc1 L_qa_exit")
    load_ptrs_and_srds(g)
    g.I("s_and_b32 s3, s2, 7")
    g.I("s_lshr_b32 s4, s2, 3")
    g.I("s_and_b32 s5, s4, 3")
    g.I("s_lshr_b32 s6, s4, 2")
    g.I("s_lshl_b32 s3, s3, 2")
    g.I("s_add_u32 s3, s3, s5")
    g.I("s_and_b32 s7, s6, 15")
    g.I("s_cmp_ge_u32 s6, 16")
    srd_sel(g, S_X, 8, 18, X_BYTES)
    srd_sel(g, S_K, 10, 20, KV_BYTES)
    srd_sel(g, S_V, 12, 22, KV_BYTES)
    srd_sel(g, S_W, 14, 24, W_BYTES)
    srd(g, S_O, 28, 29, O_BYTES)
    g.I("s_mul_i32 %s, s7, 204800" % sr(S_XOFF))
    g.I("s_mul_i32 %s, s3, 384" % sr(S_WOFF))
    g.I("s_lshl_b32 s4, s7, 5")
    g.I("s_add_u32 s4, s4, s3")
    g.I("s_mul_i32 %s, s4, 196608" % sr(S_KVOFF))
    g.I("s_mul_i32 s4, s6, 192")
    g.I("s_mul_i32 s5, s3, 6")
    g.I("s_add_u32 s4, s4, s5")
    g.I("s_mul_i32 %s, s4, 10240" % sr(S_OOFF))
    g.I("s_mov_b32 %s, 0x%08x" % (sr(S_SCALE), f32bits(SCALE)))
    g.I("s_mov_b32 %s, 0x%08x" % (sr(S_SCALE + 1), f32bits(SCALE)))
    g.I("v_lshrrev_b32 v1, 6, v0")
    g.I("v_readfirstlane_b32 %s, v1" % sr(S_WV))
    g.I("s_and_b32 %s, %s, 1" % (sr(S_QH), sr(S_WV)))
    g.I("s_cmp_ge_u32 %s, 2" % sr(S_WV))
    g.branch("s_cbranch_scc1 L_pw")
    gen_sw(g)
    g.hist, g.lgkm, g.vm = [], [], []
    g.label("L_pw", flush=False)
    gen_pw(g)
    g.hist, g.lgkm, g.vm = [], [], []
    g.label("L_qa_exit", flush=False)
    g.I("s_endpgm")


def gen_op(g):
    S_WO, S_OI, S_OUT = 32, 36, 40
    S_ASRC, S_BSRC, S_ADST, S_OUTOFF = 52, 53, 54, 55
    S_KQ = 58
    STG = 40960
    ACC = lambda nt, qt: 20 * nt + 4 * qt
    BFR = lambda buf, e, qt: 100 + 40 * buf + 20 * e + 4 * qt
    AF = [220, 224, 228, 232]
    aA = [236, 237, 238]
    voffA = [239, 240, 241, 242, 243]
    voffB = [244, 245]
    LANE = 246
    T = [247, 248, 249, 250, 251]
    g.hist, g.lgkm, g.vm = [], [], []
    g.raw(".globl op_kernel\n.p2align 8\n.type op_kernel,@function\nop_kernel:")
    g.I("s_cmp_ge_u32 s2, 256")
    g.branch("s_cbranch_scc1 L_op_exit")
    load_ptrs_and_srds(g)
    g.I("s_and_b32 s3, s2, 7")
    g.I("s_lshr_b32 s4, s2, 3")
    g.I("s_and_b32 s5, s4, 7")
    g.I("s_lshr_b32 s6, s4, 3")
    g.I("s_lshl_b32 s3, s3, 2")
    g.I("s_add_u32 s6, s6, s3")
    g.I("s_and_b32 s7, s6, 15")
    g.I("s_lshr_b32 s3, s6, 4")
    g.I("s_cmp_ge_u32 s6, 16")
    srd_sel(g, S_WO, 16, 26, W_BYTES)
    srd(g, S_OI, 28, 29, O_BYTES)
    srd(g, S_OUT, 30, 31, OUT_BYTES)
    g.I("v_lshrrev_b32 v1, 6, v0")
    g.I("v_readfirstlane_b32 %s, v1" % sr(S_WV))
    g.I("s_and_b32 %s, %s, 1" % (sr(S_QH), sr(S_WV)))
    g.I("s_lshr_b32 %s, %s, 1" % (sr(S_KQ), sr(S_WV)))
    g.I("v_and_b32 %s, 63, v0" % vr(LANE))
    g.I("s_mul_i32 %s, %s, %d" % (sr(S_ASRC), sr(S_WV), 32 * 1280))
    g.I("s_mul_i32 s4, s5, 160")
    g.I("s_add_u32 %s, %s, s4" % (sr(S_ASRC), sr(S_ASRC)))
    g.I("s_mul_i32 %s, %s, 5120" % (sr(S_ADST), sr(S_WV)))
    g.I("s_mul_i32 %s, s6, %d" % (sr(S_BSRC), 192 * 10240))
    g.I("s_mul_i32 %s, s7, 409600" % sr(S_OUTOFF))
    g.I("s_mul_i32 s3, s3, 1280")
    g.I("s_add_u32 %s, %s, s3" % (sr(S_OUTOFF), sr(S_OUTOFF)))
    g.I("s_add_u32 %s, %s, s4" % (sr(S_OUTOFF), sr(S_OUTOFF)))
    for i in range(5):
        g.I("v_add_u32 %s, %d, %s" % (vr(T[0]), 64 * i, vr(LANE)))
        g.I("v_mul_u32_u24 %s, 205, %s" % (vr(T[1]), vr(T[0])))
        g.I("v_lshrrev_b32 %s, 11, %s" % (vr(T[1]), vr(T[1])))
        g.I("v_mul_u32_u24 %s, 10, %s" % (vr(T[2]), vr(T[1])))
        g.I("v_sub_u32 %s, %s, %s" % (vr(T[2]), vr(T[0]), vr(T[2])))
        g.I("v_mul_u32_u24 %s, 1280, %s" % (vr(voffA[i]), vr(T[1])))
        g.I("v_lshl_add_u32 %s, %s, 4, %s" % (vr(voffA[i]), vr(T[2]), vr(voffA[i])))
        if 0 < i < 4:
            g.I("v_subrev_u32 %s, %d, %s" % (vr(voffA[i]), 1024 * i, vr(voffA[i])))
    g.I("s_mul_i32 s3, %s, 5120" % sr(S_QH))
    g.I("s_mul_i32 s4, %s, 20480" % sr(S_KQ))
    g.I("s_add_u32 s3, s3, s4")
    g.I("v_lshlrev_b32 %s, 4, %s" % (vr(voffB[0]), vr(LANE)))
    g.I("v_add_u32 %s, s3, %s" % (vr(voffB[0]), vr(voffB[0])))
    g.I("v_add_u32 %s, 4096, %s" % (vr(voffB[1]), vr(voffB[0])))
    g.I("v_lshrrev_b32 %s, 2, %s" % (vr(T[0]), vr(LANE)))
    g.I("v_mul_u32_u24 %s, 160, %s" % (vr(aA[0]), vr(T[0])))
    g.I("v_and_b32 %s, 3, %s" % (vr(T[0]), vr(LANE)))
    g.I("v_lshl_add_u32 %s, %s, 3, %s" % (vr(aA[0]), vr(T[0]), vr(aA[0])))
    g.I("s_mul_i32 s4, %s, 10240" % sr(S_KQ))
    g.I("v_add_u32 %s, s4, %s" % (vr(aA[0]), vr(aA[0])))
    g.I("v_add_u32 %s, %d, %s" % (vr(aA[1]), STG, vr(aA[0])))
    g.I("v_add_u32 %s, %d, %s" % (vr(aA[2]), 2 * STG, vr(aA[0])))

    def loads(sg):
        fl = []
        buf = sg % 3

        def fa():
            g.I("s_add_u32 m0, %s, %d" % (sr(S_ADST), buf * STG))
            g.I("s_add_u32 s3, %s, %d" % (sr(S_ASRC), sg * 256 * 1280))
            for i in range(4):
                g.I("buffer_load_dwordx4 %s, %s, s3 offen offset:%d lds" % (vr(voffA[i]), sr(S_WO, 4), 1024 * i), tag=("A", sg))
            g.I("s_add_u32 m0, m0, 4096")
            g.I("buffer_load_dwordx4 %s, %s, s3 offen lds" % (vr(voffA[4]), sr(S_WO, 4)), tag=("A", sg))
        fl.append(fa)
        for e in range(2):
            def fb(e=e):
                g.I("s_add_u32 s4, %s, %d" % (sr(S_BSRC), sg * 81920 + e * 10240))
                for qt in range(4):
                    g.I("buffer_load_dwordx4 %s, %s, %s, s4 offen offset:%d" % (vr(BFR(buf, e, qt), 4), vr(voffB[0]), sr(S_OI, 4), qt * 1024), tag=("B", sg))
                g.I("buffer_load_dwordx4 %s, %s, %s, s4 offen" % (vr(BFR(buf, e, 4), 4), vr(voffB[1]), sr(S_OI, 4)), tag=("B", sg))
            fl.append(fb)
        return fl

    for f in loads(0) + loads(1):
        f()
    g.wait_vm_tags({("A", 0)})
    g.barrier()
    for sg in range(24):
        buf = sg % 3
        fl = loads(sg + 2) if sg + 2 < 24 else []
        seq = [(e, nt) for e in range(2) for nt in range(5)]
        nb = len(AF)

        def rd(i):
            e, nt = seq[i]
            for ih in range(2):
                g.I("ds_read_b64_tr_b16 %s, %s offset:%d" % (vr(AF[i % nb] + 2 * ih, 2), vr(aA[buf]), e * 5120 + ih * 2560 + nt * 32))
        for i in range(nb):
            rd(i)
        for i, (e, nt) in enumerate(seq):
            for qt in range(5):
                mfma(g, ACC(nt, qt), AF[i % nb], BFR(buf, e, qt), "0" if (sg == 0 and e == 0) else None)
            if i + nb < len(seq):
                rd(i + nb)
            if fl and i % 2 == 0:
                fl.pop(0)()
        assert not fl
        g.wait_vm_tags({("A", sg + 1)}, also_lgkm0=True)
        g.barrier()
    RB = T[0]
    g.I("v_lshlrev_b32 %s, 4, %s" % (vr(RB), vr(LANE)))
    g.I("s_and_b32 s3, %s, 1" % sr(S_KQ))
    g.I("s_lshl_b32 s3, s3, 1")
    g.I("s_add_u32 s3, s3, %s" % sr(S_QH))
    g.I("s_mul_i32 s3, s3, 25600")
    g.I("v_add_u32 %s, s3, %s" % (vr(RB), vr(RB)))
    g.I("s_cmp_lt_u32 %s, 2" % sr(S_KQ))
    g.branch("s_cbranch_scc1 L_op_r1")
    for i in range(25):
        g.I("ds_write_b128 %s, %s offset:%d" % (vr(RB), vr(4 * i, 4), i * 1024))
    g.wait_lgkm0()
    g.barrier()
    g.barrier()
    g.I("s_endpgm")
    g.hist, g.lgkm, g.vm = [], [], []
    g.label("L_op_r1", flush=False)
    g.barrier()
    for i in range(25):
        g.I("ds_read_b128 %s, %s offset:%d" % (vr(100 + 4 * i, 4), vr(RB), i * 1024))
    for i in range(100):
        g.I("v_add_f32 %s, %s, %s" % (vr(i), vr(i), vr(100 + i)))
    g.I("s_cmp_eq_u32 %s, 0" % sr(S_KQ))
    g.branch("s_cbranch_scc1 L_op_r2")
    for i in range(25):
        g.I("ds_write_b128 %s, %s offset:%d" % (vr(RB), vr(4 * i, 4), i * 1024))
    g.wait_lgkm0()
    g.barrier()
    g.I("s_endpgm")
    g.hist, g.lgkm, g.vm = [], [], []
    g.label("L_op_r2", flush=False)
    g.barrier()
    g.I("v_add_u32 %s, %d, %s" % (vr(RB), 2 * 25600, vr(RB)))
    for i in range(25):
        g.I("ds_read_b128 %s, %s offset:%d" % (vr(100 + 4 * i, 4), vr(RB), i * 1024))
    for i in range(100):
        g.I("v_add_f32 %s, %s, %s" % (vr(i), vr(i), vr(100 + i)))
    VO = T[1]
    g.I("v_and_b32 %s, 15, %s" % (vr(T[2]), vr(LANE)))
    g.I("v_mul_u32_u24 %s, 2560, %s" % (vr(VO), vr(T[2])))
    g.I("v_lshrrev_b32 %s, 4, %s" % (vr(T[2]), vr(LANE)))
    g.I("v_lshl_add_u32 %s, %s, 3, %s" % (vr(VO), vr(T[2]), vr(VO)))
    g.I("s_mul_i32 s3, %s, %d" % (sr(S_QH), 80 * 2560))
    g.I("v_add_u32 %s, s3, %s" % (vr(VO), vr(VO)))
    for qt in range(5):
        g.I("s_add_u32 s3, %s, %d" % (sr(S_OUTOFF), qt * 40960))
        for nt in range(5):
            a = ACC(nt, qt)
            g.I("v_cvt_pk_bf16_f32 %s, %s, %s" % (vr(a), vr(a), vr(a + 1)))
            g.I("v_cvt_pk_bf16_f32 %s, %s, %s" % (vr(a + 1), vr(a + 2), vr(a + 3)))
            g.I("buffer_store_dwordx2 %s, %s, %s, s3 offen offset:%d" % (vr(a, 2), vr(VO), sr(S_OUT, 4), nt * 32))
    g.label("L_op_exit", flush=False)
    g.I("s_endpgm")


KD = """.section .rodata,"a"
.p2align 6
.amdhsa_kernel %s
  .amdhsa_next_free_vgpr 256
  .amdhsa_next_free_sgpr 96
  .amdhsa_accum_offset 256
  .amdhsa_group_segment_fixed_size 0
  .amdhsa_kernarg_size 104
  .amdhsa_user_sgpr_count 2
  .amdhsa_user_sgpr_kernarg_segment_ptr 1
  .amdhsa_system_sgpr_workgroup_id_x 1
.end_amdhsa_kernel
"""


def main(path):
    g = Gen()
    g.raw("; @launch kernel=qa_kernel grid=(1024,1,1) block=(256,1,1) lds=81920")
    g.raw("; @launch kernel=op_kernel grid=(256,1,1) block=(512,1,1) lds=122880")
    g.raw('.amdgcn_target "amdgcn-amd-amdhsa--gfx950"')
    g.raw(".text")
    gen_qa(g)
    gen_op(g)
    txt = g.text() + KD % "qa_kernel" + KD % "op_kernel"
    open(path, "w").write(txt)
    print("written", path, "bytes", len(txt), "nops", g.nops)


if __name__ == "__main__":
    main(sys.argv[1] if len(sys.argv) > 1 else "cdna_kernels/%s.s" % NAME)
```

```python
import re

_REG_RE = re.compile(r"^(-?)(abs\()?([vsa])(\d+)\)?$")
_RANGE_RE = re.compile(r"^([vsa])\[(\d+):(\d+)\]$")

TRANS = ("v_exp_f32", "v_log_f32", "v_rcp_f32", "v_rsq_f32", "v_sqrt_f32", "v_sin_f32", "v_cos_f32")


def regs_of(tok):
    tok = tok.strip()
    m = _RANGE_RE.match(tok)
    if m:
        return {(m.group(1), i) for i in range(int(m.group(2)), int(m.group(3)) + 1)}
    m = _REG_RE.match(tok)
    if m:
        return {(m.group(3), int(m.group(4)))}
    if tok in ("vcc", "vcc_lo", "vcc_hi"):
        return {("vcc", 0)}
    if tok == "m0":
        return {("m0", 0)}
    if tok in ("exec", "exec_lo", "exec_hi"):
        return {("exec", 0)}
    return set()


def split_ops(s):
    out, depth, cur = [], 0, ""
    for ch in s:
        if ch in "[(":
            depth += 1
        if ch in "])":
            depth -= 1
        if ch == "," and depth == 0:
            out.append(cur.strip())
            cur = ""
        else:
            cur += ch
    if cur.strip():
        out.append(cur.strip())
    return out


class Ins:
    __slots__ = ("text", "op", "kind", "rd", "wr", "srcc", "ab", "ws", "wide_store")

    def __init__(self, text):
        self.text = text
        t = text.split(";")[0].strip()
        parts = t.split(None, 1)
        op = parts[0]
        self.op = op
        rest = parts[1] if len(parts) > 1 else ""
        ops = split_ops(rest)
        toks = []
        for o in ops:
            toks.append(o.split()[0] if o.split() else o)
        mods = rest
        R = [regs_of(x) for x in toks]
        allr = set().union(*R) if R else set()
        self.rd, self.wr, self.srcc, self.ab = set(), set(), set(), set()
        self.ws = 1
        self.wide_store = set()
        if op.startswith("v_mfma"):
            self.kind = "mfma"
            self.wr = R[0]
            self.ab = R[1] | R[2]
            self.srcc = R[3]
            self.rd = self.ab | self.srcc
        elif op.startswith("ds_read") or op.startswith("ds_bpermute") or op.startswith("ds_swizzle"):
            self.kind = "ds"
            self.wr = R[0]
            self.rd = set().union(*R[1:])
        elif op.startswith("ds_write"):
            self.kind = "ds"
            self.rd = allr
        elif op.startswith("buffer_load") or op.startswith("global_load"):
            self.kind = "vmem"
            if re.search(r"\blds\b", mods):
                self.rd = allr | {("m0", 0)}
            else:
                self.wr = R[0]
                self.rd = set().union(*R[1:])
        elif op.startswith("buffer_store") or op.startswith("global_store"):
            self.kind = "vmem"
            self.rd = allr
            if "x4" in op or "x3" in op:
                self.wide_store = R[0] if op.startswith("buffer") else R[1]
        elif op.startswith("buffer_atomic") or op.startswith("global_atomic"):
            self.kind = "vmem"
            self.rd = allr
            if re.search(r"\bsc0\b", mods):
                self.wr = R[0]
        elif op.startswith("buffer_wbl2") or op.startswith("buffer_inv"):
            self.kind = "vmem"
        elif op.startswith("v_permlane"):
            self.kind = "permlane"
            self.rd = allr
            self.wr = allr
        elif op.startswith("v_readfirstlane") or op.startswith("v_readlane"):
            self.kind = "readlane"
            self.wr = R[0]
            self.rd = set().union(*R[1:])
        elif op.startswith("v_cmp"):
            self.kind = "valu"
            self.wr = R[0]
            self.rd = set().union(*R[1:])
        elif op.startswith("v_"):
            base = op.replace("_e32", "").replace("_e64", "")
            self.kind = "trans" if base in TRANS else ("dpp" if "dpp" in op else "valu")
            self.wr = R[0]
            self.rd = set().union(*R[1:]) if len(R) > 1 else set()
            if op.startswith("v_fmac") or op.startswith("v_dot2c"):
                self.rd |= R[0]
            if op.startswith("v_add_co") or op.startswith("v_addc_co") or op.startswith("v_sub_co"):
                self.wr |= R[1]
                self.rd = set().union(*R[2:])
            if op.startswith("v_cndmask") and len(R) == 3:
                self.rd |= {("vcc", 0)}
        elif op == "s_nop":
            self.kind = "nop"
            self.ws = int(toks[0], 0) + 1
        elif op.startswith("s_load") or op.startswith("s_buffer_load"):
            self.kind = "smem"
            self.wr = R[0]
            self.rd = set().union(*R[1:])
        elif op.startswith("s_cmp") or op.startswith("s_bitcmp"):
            self.kind = "salu"
            self.rd = allr
        elif op.startswith("s_cbranch") or op in ("s_branch", "s_barrier", "s_waitcnt", "s_endpgm", "s_setprio", "s_sleep"):
            self.kind = "ctrl"
        elif op.startswith("s_"):
            self.kind = "salu"
            self.wr = R[0] if R else set()
            self.rd = set().union(*R[1:]) if len(R) > 1 else set()
            if "saveexec" in op:
                self.wr |= {("exec", 0)}
        else:
            raise ValueError("unknown op " + text)


VALU_KINDS = ("valu", "trans", "dpp", "permlane", "readlane")


def needed_ws(prev, cur):
    n = 0
    pv = prev.kind in VALU_KINDS
    cv = cur.kind in VALU_KINDS
    pw_v = {r for r in prev.wr if r[0] in ("v", "a")}
    pw_s = {r for r in prev.wr if r[0] in ("s", "vcc")}
    if pv:
        if cur.kind == "mfma" and pw_v & cur.rd:
            n = max(n, 2)
        if cur.kind in ("permlane", "dpp") and pw_v & cur.rd:
            n = max(n, 2)
        if cur.kind == "readlane" and pw_v & cur.rd:
            n = max(n, 1)
        if prev.kind == "trans" and cv and cur.kind != "trans" and pw_v & (cur.rd | cur.wr):
            n = max(n, 1)
        if prev.kind == "trans" and cv and pw_v & cur.rd:
            n = max(n, 1)
        if pw_s:
            if cv and pw_s & cur.rd:
                n = max(n, 4 if cur.kind == "readlane" else 2)
            if cur.kind == "vmem" and pw_s & cur.rd:
                n = max(n, 5)
            if cur.kind in ("salu", "ctrl", "smem") and pw_s & cur.rd:
                n = max(n, 1)
        if ("exec", 0) in prev.wr:
            n = max(n, 5)
    if prev.kind == "mfma":
        if cur.kind == "mfma":
            if prev.wr & cur.ab:
                n = max(n, 8)
            if prev.wr & cur.srcc and prev.wr != cur.srcc:
                n = max(n, 6)
        elif cv or cur.kind in ("ds", "vmem"):
            if prev.wr & (cur.rd | cur.wr):
                n = max(n, 8)
        if cv and prev.srcc & cur.wr:
            n = max(n, 3)
    if prev.kind == "salu" and ("m0", 0) in prev.wr and cur.kind == "vmem" and ("m0", 0) in cur.rd:
        n = max(n, 1)
    if prev.wide_store and prev.wide_store & cur.wr:
        n = max(n, 2)
    return n


class Gen:
    def __init__(self):
        self.out = []
        self.hist = []
        self.lgkm = []
        self.vm = []
        self.nops = 0

    def raw(self, s):
        self.out.append(s)

    def comment(self, s):
        self.out.append("    ; " + s)

    def _emit(self, ins):
        self.out.append(ins)
        self.hist.append(ins)
        if len(self.hist) > 24:
            self.hist.pop(0)

    def _pad(self, ins):
        need = 0
        dist = 0
        for p in reversed(self.hist):
            n = needed_ws(p, ins)
            if n > dist:
                need = max(need, n - dist)
            dist += p.ws
            if dist >= 12:
                break
        while need > 0:
            k = min(need, 16)
            self._emit(Ins("s_nop %d" % (k - 1)))
            self.nops += k
            need -= k

    def I(self, text, tag=None):
        ins = Ins(text)
        touched = ins.rd | ins.wr
        idx = -1
        for i, d in enumerate(self.lgkm):
            if d & touched:
                idx = i
        vidx = -1
        for i, (t, d) in enumerate(self.vm):
            if d & touched:
                vidx = i
        w = []
        if vidx >= 0:
            n = len(self.vm) - 1 - vidx
            n = min(n, 63)
            w.append("vmcnt(%d)" % n)
            self.vm = self.vm[len(self.vm) - n:] if n else []
        if idx >= 0:
            n = len(self.lgkm) - 1 - idx
            n = min(n, 15)
            w.append("lgkmcnt(%d)" % n)
            self.lgkm = self.lgkm[len(self.lgkm) - n:] if n else []
        if w:
            self._emit(Ins("s_waitcnt " + " ".join(w)))
        self._pad(ins)
        self._emit(ins)
        if ins.kind == "ds":
            self.lgkm.append(set(ins.wr))
        elif ins.kind == "vmem":
            self.vm.append((tag, set(ins.wr)))
        return ins

    def need(self, regs):
        idx = -1
        for i, d in enumerate(self.lgkm):
            if d & regs:
                idx = i
        if idx >= 0:
            n = min(len(self.lgkm) - 1 - idx, 15)
            self.lgkm = self.lgkm[len(self.lgkm) - n:] if n else []
            self._emit(Ins("s_waitcnt lgkmcnt(%d)" % n))

    def snapshot(self):
        return ([set(d) for d in self.lgkm], [(t, set(d)) for t, d in self.vm])

    def wait_lgkm0(self):
        if self.lgkm:
            self._emit(Ins("s_waitcnt lgkmcnt(0)"))
            self.lgkm = []

    def wait_vm_tags(self, tags, also_lgkm0=False):
        idx = -1
        for i, (t, d) in enumerate(self.vm):
            if t in tags:
                idx = i
        w = []
        if idx >= 0:
            n = len(self.vm) - 1 - idx
            assert n <= 63
            w.append("vmcnt(%d)" % n)
            self.vm = self.vm[len(self.vm) - n:] if n else []
        if also_lgkm0 and self.lgkm:
            w.append("lgkmcnt(0)")
            self.lgkm = []
        if w:
            self._emit(Ins("s_waitcnt " + " ".join(w)))

    def wait_all(self):
        self._emit(Ins("s_waitcnt vmcnt(0) lgkmcnt(0)"))
        self.vm = []
        self.lgkm = []

    def barrier(self):
        assert not self.lgkm, "LDS ops outstanding at barrier"
        self._emit(Ins("s_barrier"))

    def label(self, name, flush=True):
        if flush:
            self.safe()
        self.out.append(name + ":")

    def safe(self):
        need = 0
        dist = 0
        for p in reversed(self.hist):
            n = 0
            if p.kind == "mfma":
                n = 8
            elif p.kind in VALU_KINDS:
                n = 5 if any(r[0] in ("s", "vcc", "exec") for r in p.wr) else 2
            elif p.wide_store:
                n = 2
            elif p.kind == "salu" and ("m0", 0) in p.wr:
                n = 1
            if n > dist:
                need = max(need, n - dist)
            dist += p.ws
            if dist >= 12:
                break
        while need > 0:
            k = min(need, 16)
            self._emit(Ins("s_nop %d" % (k - 1)))
            self.nops += k
            need -= k

    def branch(self, text):
        self._emit(Ins("s_nop 0")) if False else None
        need = 0
        dist = 1
        for p in reversed(self.hist):
            n = 0
            if p.kind == "mfma":
                n = 8
            elif p.kind in VALU_KINDS:
                n = 5 if any(r[0] in ("s", "vcc", "exec") for r in p.wr) else 2
            elif p.wide_store:
                n = 2
            elif p.kind == "salu" and ("m0", 0) in p.wr:
                n = 1
            if n > dist:
                need = max(need, n - dist)
            dist += p.ws
            if dist >= 12:
                break
        while need > 0:
            k = min(need, 16)
            self._emit(Ins("s_nop %d" % (k - 1)))
            self.nops += k
            need -= k
        self._emit(Ins(text))

    def text(self):
        lines = []
        for o in self.out:
            if isinstance(o, Ins):
                lines.append("    " + o.text)
            else:
                lines.append(o)
        return "\n".join(lines) + "\n"


def vr(base, n=1):
    return "v%d" % base if n == 1 else "v[%d:%d]" % (base, base + n - 1)


def sr(base, n=1):
    return "s%d" % base if n == 1 else "s[%d:%d]" % (base, base + n - 1)


def ar(base, n=1):
    return "a%d" % base if n == 1 else "a[%d:%d]" % (base, base + n - 1)


def R(x, n=1):
    if isinstance(x, tuple):
        return ar(x[1], n)
    return vr(x, n)


def Roff(x, k):
    if isinstance(x, tuple):
        return (x[0], x[1] + k)
    return x + k


def Rset(x, n):
    if isinstance(x, tuple):
        return {("a", x[1] + i) for i in range(n)}
    return {("v", x + i) for i in range(n)}
```

```python
import sys

sys.path.insert(0, "gen")
import gen2
from gen2 import (Gen, vr, sr, ar, R, Roff, Rset, NAME, X_BYTES, W_BYTES, KV_BYTES, OUT_BYTES, SLOT, XSZ, VB, FLAG, SCALE, OPT,
                  f32bits, mf, cost_of, do_op, op_class, load_ptrs, srd, srd_sel, emit_rho, emit_aV, emit_aRow, Phase, run_phase,
                  interleave_sm, KD, FB)

KNAME = NAME + "_kernel"
WS_BYTES = 128 << 20
P0_OFF = 64 << 20
P1_OFF = 80 << 20
QP_OFF = 96 << 20
CNT_OFF = 127 << 20
CNT_STRIDE = 4352
OOB = 0x7f000000
REG = 81920

S_X, S_W, S_K, S_V, S_O = 32, 36, 40, 44, 48
S_NSIG, S_XBASE, S_NOOFF, S_OOFF = 52, 53, 54, 55
S_WV, S_QPARK = 56, 57
S_T0, S_T1, S_T2, S_CSIG = 58, 59, 60, 61
S_CNT, S_PC, S_PASS = 62, 63, 64
S_KSRC, S_VSRC = 65, 66
S_WK, S_XU = 67, 68
S_KVD, S_XD = 69, 70
S_WSRC = 71
S_SCALE = 72
S_XSRC, S_ROT, S_THR, S_KVCUR = 74, 75, 76, 77
S_DBG, S_WO, S_OUT = 84, 88, 92
S_SIGW, S_SIGV, S_H0, S_PAIR, S_OPPAIR, S_NT4 = 96, 97, 98, 99, 100, 101
S_WD, S_QH, S_BB = 8, 9, 10
S_ASRC, S_BSRC, S_ODST, S_OUTOFF, S_RT, S_I, S_A, S_B, S_N, S_TRIP, S_BND, S_M2, S_V2, S_CW = range(12, 26)
S_C0, S_C1 = 4, 5
S_POFF, S_FW, S_FSH = 30, 31, 11
S_KVEND = 7
S_SIGW2, S_SIGV2 = 80, 81
S_UNP = 6
S_NROT, S_NKV, S_KVDN, S_WDT, S_XDT = 80, 81, 12, 13, 15

Q = lambda ks, qt: 8 * ((ks % 3) * 5 + qt) + 4 * (ks // 3)
QA = lambda dt, qt: (8 * ((dt >> 1) * 5 + qt) + 4 * (dt & 1)) if dt < 6 else ("a", 20 * (dt - 6) + 4 * qt)
G = lambda i, qt: 120 + 20 * i + 4 * qt
NM = lambda qt: 180 + 4 * qt
L = 200
vSIG, vSIGD = 205, 206
aK = [216, 217]
aV = [218, 219, 220, 221]
aX = [222, 223]
voffKV = [224, 225, 226]
voffW = [227, 228, 229]
voffX = [230, 231, 232, 233]
voffO = 234
LANE = 235
MG = 236
aW = [241, 242, 243, 244]
T = list(range(245, 256)) + [207]
ACC = lambda dt, qt: ("a", 20 * dt + 4 * qt)


TAGOFF = [0]


class GatedList:
    def __init__(self, items, gates):
        self.items, self.gates, self.taken, self.limit = list(items), list(gates), 0, 0

    def gate(self, gi):
        while self.gates and self.gates[0][0] <= gi:
            self.limit = self.gates.pop(0)[1]

    def __bool__(self):
        return self.taken < self.limit

    def __getitem__(self, i):
        return self.items[self.taken + i]

    def pop(self, i):
        self.taken += 1
        return self.items[self.taken - 1]

    def rest(self):
        return self.items[self.taken:]


def reset(g):
    g.hist, g.lgkm, g.vm = [], [], []


def st(g, i):
    if not OPT["stamps"]:
        return
    g.wait_lgkm0()
    g.I("s_memrealtime s[78:79]" if OPT.get("rt") else "s_memtime s[78:79]")
    g.I("s_waitcnt lgkmcnt(0)")
    g.I("v_mov_b32 %s, s78" % vr(207))
    g.I("s_lshl_b32 s79, s2, 2")
    g.I("s_add_u32 s79, s79, %s" % sr(S_WV))
    g.I("s_lshl_b32 s79, s79, 8")
    g.I("s_and_b32 s78, %s, 7" % sr(S_PC))
    g.I("s_lshl_b32 s78, s78, 5")
    g.I("s_add_u32 s79, s79, s78")
    g.I("s_add_u32 s79, s79, %d" % ((126 << 20) + 4 * i))
    g.I("buffer_store_dword %s, %s, %s, s79 offen" % (vr(207), vr(vSIG), sr(S_O, 4)), tag="stamp")
    g.vm.pop()


def rd_T(base, slot, dt, buf):
    return ["ds_read_b64_tr_b16 %s, %s offset:%d" % (R(Roff(buf, 2 * ih), 2), vr(base[dt & 3]), slot * SLOT + ih * 6144 + (dt >> 2) * 128)
            for ih in range(2)]


def rd_K(slot, n, buf):
    kt, ks = n // 6, n % 6
    return ["ds_read_b128 %s, %s offset:%d" % (R(buf, 4), vr(aK[ks & 1]), slot * SLOT + kt * 6144 + (ks >> 1) * 128)]


def rd_B(t, qt):
    return "ds_read_b128 %s, %s offset:%d" % (vr(G(t & 1, qt), 4), vr(aX[t & 1]), ((t >> 1) & 1) * XSZ + qt * 2048)


def dma_KV(g, which, j):
    srdr = S_K if which == "K" else S_V
    src = S_KSRC if which == "K" else S_VSRC
    base = (0 if which == "K" else VB) + (j % 3) * SLOT
    ops = []
    BST = 32 * 196608
    for gam in range(2):
        if OPT.get("kvburst"):
            ops.append("s_add_u32 m0, %s, %d" % (sr(S_WD), base + REG * gam))
        else:
            ops.append("s_add_u32 m0, %s, %d" % (sr(S_KVD), base + 3072 * gam))
        for k in range(3):
            ops.append((1, lambda k=k: g.I("buffer_load_dwordx4 %s, %s, %s offen offset:%d %slds" % (vr(voffKV[k]), sr(srdr, 4), sr(src), 1024 * k, "" if OPT.get("nont") else "nt "), tag=(which, j + (TAGOFF[0] if j < 13 else 0))),
                        "vmemb" if (OPT.get("kvburst") and k) else "vmem"))
        if OPT.get("kvburst"):
            ops.append("s_add_u32 %s, %s, %d" % (sr(src), sr(src), BST if gam == 0 else (SLOT - BST) & 0xffffffff))
        else:
            ops.append("s_add_u32 %s, %s, %d" % (sr(src), sr(src), 3072 if gam == 0 else SLOT - 3072))
    if OPT.get("kvrot"):
        def wrap():
            g.I("s_cmp_ge_u32 %s, %s" % (sr(src), sr(S_KVEND)))
            g.I("s_cselect_b32 %s, %s, %s" % (sr(src), sr(S_KVCUR), sr(src)))
        ops.append((2, wrap))
    return ops


def dma_KVn(g, which, j):
    srdr = S_K if which == "K" else S_V
    base = (0 if which == "K" else VB) + (j % 3) * SLOT

    def src():
        g.I("s_add_u32 %s, %s, %d" % (sr(S_T2), sr(S_NROT), j * SLOT))
        g.I("s_cmp_ge_u32 %s, 196608" % sr(S_T2))
        g.I("s_cselect_b32 s3, 196608, 0")
        g.I("s_sub_u32 %s, %s, s3" % (sr(S_T2), sr(S_T2)))
        g.I("s_add_u32 %s, %s, %s" % (sr(S_T2), sr(S_T2), sr(S_NKV)))
    ops = [(3, src)]
    for gam in range(2):
        ops.append("s_add_u32 m0, %s, %d" % (sr(S_KVDN), base + 3072 * gam))
        for k in range(3):
            ops.append((1, lambda k=k: g.I("buffer_load_dwordx4 %s, %s, %s offen offset:%d nt lds" % (vr(voffKV[k]), sr(srdr, 4), sr(S_T2), 1024 * k), tag=("N" + which, j)), "vmem"))
        if gam == 0:
            ops.append("s_add_u32 %s, %s, 3072" % (sr(S_T2), sr(S_T2)))
    return ops


def dma_W(g, t, tail=False):
    base = VB + ((t + 1) % 3) * SLOT
    ops = ["s_add_u32 %s, %s, %s" % (sr(S_T0), sr(S_WSRC), sr(S_WK)),
           "s_add_u32 m0, %s, %d" % (sr(S_WDT if tail else S_WD), base)]
    for k in range(3):
        ops.append((1, lambda k=k: g.I("buffer_load_dwordx4 %s, %s, %s offen offset:%d %slds" % (vr(voffW[k]), sr(S_W, 4), sr(S_T0), 1024 * k, "nt " if OPT.get("ntW") else ""), tag=("W", t)), "vmem"))

    def adv():
        g.I("s_add_u32 %s, %s, %d" % (sr(S_WK), sr(S_WK), 32 * 12288))
        g.I("s_cmp_ge_u32 %s, %d" % (sr(S_WK), 640 * 12288))
        g.I("s_cselect_b32 %s, 0, %s" % (sr(S_WK), sr(S_WK)))
    ops.append((3, adv))
    return ops


def dma_X(g, u, part=None, tail=False):
    base = (u & 1) * XSZ
    groups = []
    for grp, n in ((0, 4), (1, 4), (2, 2)):
        ops = []
        if grp == 0:
            ops.append("s_add_u32 %s, %s, %s" % (sr(S_T1), sr(S_XSRC), sr(S_XU)))
        ops.append("s_add_u32 m0, %s, %d" % (sr(S_XDT if tail else S_XD), base + 4096 * grp))
        for k in range(n):
            ops.append((1, lambda k=k: g.I("buffer_load_dwordx4 %s, %s, %s offen offset:%d %slds" % (vr(voffX[k]), sr(S_X, 4), sr(S_T1), 1024 * k, "nt " if OPT.get("ntW") else ""), tag=("X", u)), "vmem"))
        if grp < 2:
            ops.append("s_add_u32 %s, %s, %d" % (sr(S_T1), sr(S_T1), 32 * 1280))
        else:
            def adv():
                g.I("s_add_u32 %s, %s, 128" % (sr(S_XU), sr(S_XU)))
                g.I("s_cmp_ge_u32 %s, 1280" % sr(S_XU))
                g.I("s_cselect_b32 %s, 0, %s" % (sr(S_XU), sr(S_XU)))
            ops.append((3, adv))
        groups.append(ops)
    if part is None:
        return groups[0] + groups[1] + groups[2]
    return groups[0] if part == 0 else groups[1] + groups[2]


def softmax_ops(Sg0, Sg1, kt, qt):
    s = G(Sg1 if kt else Sg0, qt)
    ops = ["v_exp_f32 %s, %s" % (vr(s + r), vr(s + r)) for r in range(4)]
    add = ["v_add_f32 %s, %s, %s" % (vr(L + qt), vr(L + qt), vr(s + r)) for r in range(4)]
    b = G(Sg0, qt) + 2 * kt
    c0 = "v_cvt_pk_bf16_f32 %s, %s, %s" % (vr(b), vr(s), vr(s + 1))
    c1 = "v_cvt_pk_bf16_f32 %s, %s, %s" % (vr(b + 1), vr(s + 2), vr(s + 3))
    return ops + [add[0], c0, add[1], c1, add[2], add[3]]


def qp_phase(t):
    slot = (t + 1) % 3
    return Phase([(lambda buf, dt=dt: [mf(QA(dt, qt), buf, G(t & 1, qt), "0" if t == 0 else None) for qt in range(5)]) for dt in range(12)],
                 [(lambda buf, dt=dt: rd_T(aW, slot, dt, buf)) for dt in range(12)])


def qk_groups(jk, Sg0, Sg1, zero_c, ksmajor=False):
    mfm, rds = [], []
    for n0 in range(12):
        kt, ks = (n0 & 1, n0 >> 1) if ksmajor else (n0 // 6, n0 % 6)
        n = kt * 6 + ks
        mfm.append(lambda buf, kt=kt, ks=ks: [mf(G(Sg1 if kt else Sg0, qt), buf, Q(ks, qt), (("0" if zero_c else NM(qt)) if ks == 0 else None)) for qt in range(5)])
        rds.append(lambda buf, n=n: rd_K(jk % 3, n, buf))
    return mfm, rds


def pv_groups(jv, Pg, first):
    mfm, rds = [], []
    for dt in range(12):
        mfm.append(lambda buf, dt=dt: [mf(ACC(dt, qt), buf, G(Pg, qt), "0" if first else None) for qt in range(5)])
        rds.append(lambda buf, dt=dt: rd_T(aV, jv % 3, dt, buf))
    return mfm, rds


def att_phase(j):
    m1, r1 = qk_groups(j + 1, (j + 1) & 1, 2, False)
    m2, r2 = pv_groups(j, j & 1, j == 0)
    return Phase(m1 + m2, r1 + r2)


def set_wsrc(g, grp):
    g.I("s_add_u32 s3, %s, %d" % (sr(S_H0), 8 * grp))
    g.I("s_mul_i32 %s, s3, 384" % sr(S_WSRC))
    g.I("s_lshl_b32 s3, %s, 4" % sr(S_QH))
    g.I("s_lshl_b32 s4, %s, 2" % sr(S_BB))
    g.I("s_add_u32 s3, s3, s4")
    g.I("s_mul_i32 s3, s3, 12288")
    g.I("s_add_u32 %s, %s, s3" % (sr(S_WSRC), sr(S_WSRC)))


def set_att(g, grp):
    g.I("s_add_u32 s3, %s, %d" % (sr(S_H0), 8 * grp))
    g.I("s_and_b32 s4, %s, %d" % (sr(S_PAIR), 14 if OPT.get("kvburst") else 15))
    g.I("s_lshl_b32 s4, s4, 5")
    g.I("s_add_u32 s4, s4, s3")
    g.I("s_mul_i32 %s, s4, 196608" % sr(S_KVCUR))
    g.I("s_mul_i32 s4, %s, 6144" % sr(S_QH))
    g.I("s_add_u32 %s, %s, %s" % (sr(S_KVCUR), sr(S_KVCUR), sr(S_WD) if OPT.get("kvburst") else "s4"))
    g.I("s_add_u32 %s, %s, 196608" % (sr(S_KVEND), sr(S_KVCUR)))
    if OPT.get("kvrot"):
        g.I("s_lshr_b32 s4, s2, 4")
        g.I("s_and_b32 s5, s2, 7")
        g.I("s_lshl_b32 s5, s5, 1")
        g.I("s_add_u32 s4, s4, s5")
        if not OPT.get("kvburst"):
            g.I("s_lshl_b32 s5, %s, 3" % sr(S_BB))
            g.I("s_add_u32 s4, s4, s5")
        g.I("s_and_b32 s4, s4, 15")
        g.I("s_mul_i32 s4, s4, %d" % SLOT)
    else:
        g.I("s_mov_b32 s4, 0")
    g.I("s_mov_b32 %s, s4" % sr(S_NROT))
    g.I("s_add_u32 %s, %s, s4" % (sr(S_KSRC), sr(S_KVCUR)))
    g.I("s_mov_b32 %s, %s" % (sr(S_VSRC), sr(S_KSRC)))
    g.I("s_mul_i32 s4, %s, 192" % sr(S_PAIR))
    g.I("s_mul_i32 s3, s3, 6")
    g.I("s_add_u32 s4, s4, s3")
    g.I("s_mul_i32 %s, s4, 10240" % sr(S_NOOFF))
    g.I("s_and_b32 s3, %s, 4" % sr(S_H0))
    g.I("s_lshl_b32 %s, %d, s3" % (sr(S_NSIG), 1 << (8 * grp)))


def signal_ops(g, W=None, V=None):
    W, V = W or S_SIGW, V or S_SIGV
    return ["v_mov_b32 %s, %s" % (vr(vSIGD), sr(V)),
            (1, lambda: g.I("buffer_atomic_add %s, %s, %s, %s offen sc1" % (vr(vSIGD), vr(vSIG), sr(S_O, 4), sr(W)), tag="sig"), "vmem"),
            "s_mov_b32 %s, 0x%x" % (sr(W), OOB)]


_poll_n = [0]


def poll(g, soff, mask, val, srdr=S_O, acquire=True):
    n = _poll_n[0]
    _poll_n[0] += 1
    g.I("v_mov_b32 %s, 0" % vr(T[0]))
    g.I("s_mov_b32 s78, 0")
    g.wait_all()
    g.I("s_cmp_lg_u32 %s, 0" % sr(S_WV))
    g.branch("s_cbranch_scc1 L_poll%d_skip" % n)
    g.label("L_poll%d" % n)
    g.I("buffer_load_dword %s, %s, %s, %s offen sc1" % (vr(T[1]), vr(T[0]), sr(srdr, 4), sr(soff)))
    g.I("s_waitcnt vmcnt(0)")
    g.vm = []
    g.I("v_readfirstlane_b32 s3, %s" % vr(T[1]))
    g.I("s_and_b32 s3, s3, %s" % sr(mask))
    g.I("s_cmp_eq_u32 s3, %s" % sr(val))
    g.branch("s_cbranch_scc1 L_poll%d_done" % n)
    g.I("s_sleep %d" % OPT.get("sleep", 16))
    g.I("s_add_u32 s78, s78, 1")
    g.I("s_cmp_lt_u32 s78, %d" % OPT.get("spin", 1000000))
    g.branch("s_cbranch_scc1 L_poll%d" % n)
    g.label("L_poll%d_done" % n, flush=False)
    if acquire:
        g.I("buffer_inv sc1")
        g.wait_all()
    g.label("L_poll%d_skip" % n, flush=False)
    g.barrier()


DR_TMP, DR_FR = [160, 168], [176, 192, 196, 248]


def drain_ops(g, pairs, pk=False):
    ops = []
    for p in pairs:
        ops.append("s_add_u32 %s, %s, %d" % (sr(S_T2), sr(S_OOFF), p * 10240))
        for qt in range(5):
            i = p * 5 + qt
            t0 = DR_TMP[i % len(DR_TMP)]
            F = DR_FR[i % len(DR_FR)]
            for r in range(4):
                ops.append("v_accvgpr_read_b32 %s, %s" % (vr(t0 + r), R(Roff(ACC(2 * p, qt), r))))
                ops.append("v_accvgpr_read_b32 %s, %s" % (vr(t0 + 4 + r), R(Roff(ACC(2 * p + 1, qt), r))))
            if pk:
                for r in range(0, 8, 2):
                    ops.append("v_pk_mul_f32 %s, %s, %s" % (vr(t0 + r, 2), vr(t0 + r, 2), vr(NM(0) + 2 * qt, 2)))
            else:
                for r in range(8):
                    ops.append("v_mul_f32 %s, %s, %s" % (vr(t0 + r), vr(t0 + r), vr(NM(0) + 2 * qt)))
            for r in range(4):
                ops.append("v_cvt_pk_bf16_f32 %s, %s, %s" % (vr(F + r), vr(t0 + 2 * r), vr(t0 + 2 * r + 1)))
            if qt == 4:
                ops.append("s_add_u32 %s, %s, 4096" % (sr(S_T2), sr(S_T2)))
            ops.append((1, lambda F=F, qt=qt: g.I("buffer_store_dwordx4 %s, %s, %s, %s offen offset:%d sc1" % (vr(F, 4), vr(voffO), sr(S_O, 4), sr(S_T2), (qt % 4) * 1024), tag="st"), "vmem"))
    return ops


def fin_ops(ks, tmp=(180, 188), pk=False):
    ops = []
    for qt in range(5):
        F = Q(ks, qt)
        if ks < 3:
            t0 = F
        else:
            t0 = tmp[qt & 1]
            for r in range(4):
                ops.append("v_accvgpr_read_b32 %s, %s" % (vr(t0 + r), R(Roff(QA(2 * ks, qt), r))))
                ops.append("v_accvgpr_read_b32 %s, %s" % (vr(t0 + 4 + r), R(Roff(QA(2 * ks + 1, qt), r))))
        if pk:
            for r in range(0, 8, 2):
                ops.append("v_pk_mul_f32 %s, %s, %s" % (vr(t0 + r, 2), vr(t0 + r, 2), sr(S_SCALE, 2)))
        else:
            for r in range(8):
                ops.append("v_mul_f32 %s, %s, %s" % (vr(t0 + r), sr(S_SCALE), vr(t0 + r)))
        for r in range(4):
            ops.append("v_cvt_pk_bf16_f32 %s, %s, %s" % (vr(F + r), vr(t0 + 2 * r), vr(t0 + 2 * r + 1)))
    for qt in range(5):
        F = Q(ks, qt)
        ops.append("v_permlane32_swap_b32 %s, %s" % (vr(F), vr(F + 2)))
        ops.append("v_permlane32_swap_b32 %s, %s" % (vr(F + 1), vr(F + 3)))
    for qt in range(5):
        F = Q(ks, qt)
        ops.append("v_permlane16_swap_b32 %s, %s" % (vr(F), vr(F + 2)))
        ops.append("v_permlane16_swap_b32 %s, %s" % (vr(F + 1), vr(F + 3)))
    return ops


def gen_kernel(g):
    g.raw(".globl %s\n.p2align 8\n.type %s,@function\n%s:" % (KNAME, KNAME, KNAME))
    g.I("s_cmp_ge_u32 s2, 256")
    g.branch("s_cbranch_scc1 L_exit")
    if OPT["stamps"]:
        g.I("s_memrealtime s[80:81]")
    g.I("s_load_dwordx2 s[6:7], s[0:1], 88")
    load_ptrs(g)
    srd(g, S_DBG, 6, 7, 256)
    g.I("s_and_b32 s3, s2, 7")
    g.I("s_cmp_ge_u32 s3, 4")
    srd_sel(g, S_X, 8, 18, X_BYTES)
    srd_sel(g, S_K, 10, 20, KV_BYTES)
    srd_sel(g, S_V, 12, 22, KV_BYTES)
    srd_sel(g, S_W, 14, 24, W_BYTES)
    srd_sel(g, S_WO, 16, 26, W_BYTES)
    srd(g, S_O, 28, 29, WS_BYTES)
    srd(g, S_OUT, 30, 31, OUT_BYTES)
    g.I("v_lshrrev_b32 v1, 6, v0")
    g.I("v_readfirstlane_b32 %s, v1" % sr(S_WV))
    g.I("v_and_b32 %s, 63, v0" % vr(LANE))
    if OPT.get("codepf"):
        nblk = OPT.get("codepf")
        g.I("s_getpc_b64 s[78:79]")
        g.I("s_lshr_b32 s4, s2, 3")
        g.I("s_lshl_b32 s4, s4, 2")
        g.I("s_add_u32 s4, s4, %s" % sr(S_WV))
        g.I("s_and_b32 s4, s4, 15")
        g.I("s_min_u32 s4, s4, %d" % (nblk - 1))
        g.I("s_lshl_b32 s4, s4, 13")
        g.I("s_add_u32 s78, s78, s4")
        g.I("s_addc_u32 s79, s79, 0")
        g.I("v_lshlrev_b32 v2, 7, %s" % vr(LANE))
        g.I("v_mov_b32 v3, s79")
        g.I("v_add_co_u32 v2, vcc, s78, v2")
        g.I("v_addc_co_u32 v3, vcc, 0, v3, vcc")
        g.I("global_load_dword v4, v[2:3], off")
        g.vm.pop()
    g.I("s_and_b32 %s, %s, 1" % (sr(S_QH), sr(S_WV)))
    g.I("s_lshr_b32 %s, %s, 1" % (sr(S_BB), sr(S_WV)))
    g.I("s_lshr_b32 s4, s2, 4")
    g.I("s_bfe_u32 s5, s2, 0x10003")
    g.I("s_lshl_b32 %s, s5, 3" % sr(S_PC))
    g.I("s_and_b32 s6, s3, 1")
    if OPT.get("hqflip"):
        g.I("s_xor_b32 s6, s6, 1")
    g.I("s_lshl_b32 s6, s6, 2")
    g.I("s_and_b32 s7, s4, 3")
    g.I("s_add_u32 %s, s6, s7" % sr(S_H0))
    g.I("s_mov_b32 %s, s7" % sr(S_NT4))
    g.I("s_lshr_b32 s4, s4, 2")
    g.I("s_lshr_b32 s6, s3, 1")
    g.I("s_lshl_b32 s6, s6, 3")
    g.I("s_lshl_b32 %s, s4, 1" % sr(S_PAIR))
    g.I("s_add_u32 %s, %s, s6" % (sr(S_PAIR), sr(S_PAIR)))
    g.I("s_add_u32 %s, %s, %s" % (sr(S_PAIR), sr(S_PAIR), sr(S_BB)))
    g.I("s_lshl_b32 s6, s3, 2")
    g.I("s_add_u32 %s, s6, s4" % sr(S_OPPAIR))
    if OPT.get("rot2", True):
        g.I("s_mul_i32 %s, s4, 5" % sr(S_ROT))
        g.I("s_add_u32 %s, %s, 1" % (sr(S_ROT), sr(S_ROT)))
        g.I("s_lshr_b32 %s, %s, 1" % (sr(S_ROT), sr(S_ROT)))
        g.I("s_lshr_b32 s6, s7, 1")
        g.I("s_add_u32 %s, %s, s5" % (sr(S_ROT), sr(S_ROT)))
    else:
        g.I("s_lshl_b32 %s, s4, 1" % sr(S_ROT))
    g.I("s_add_u32 %s, %s, s7" % (sr(S_ROT), sr(S_ROT)))
    g.I("s_lshl_b32 s5, s5, 2")
    g.I("s_add_u32 %s, %s, s5" % (sr(S_ROT), sr(S_ROT)))
    g.I("s_cmp_ge_u32 %s, 10" % sr(S_ROT))
    g.I("s_cselect_b32 s5, 10, 0")
    g.I("s_sub_u32 %s, %s, s5" % (sr(S_ROT), sr(S_ROT)))
    if OPT.get("rot3"):
        g.I("s_add_u32 %s, s4, s7" % sr(S_ROT))
        g.I("s_and_b32 %s, %s, 3" % (sr(S_ROT), sr(S_ROT)))
        g.I("s_mul_i32 %s, %s, 5" % (sr(S_ROT), sr(S_ROT)))
        g.I("s_add_u32 %s, %s, 1" % (sr(S_ROT), sr(S_ROT)))
        g.I("s_lshr_b32 %s, %s, 1" % (sr(S_ROT), sr(S_ROT)))
    g.I("s_add_u32 %s, s4, s7" % sr(S_RT))
    if OPT.get("xmap"):
        g.I("s_lshr_b32 s4, s2, 5")
        g.I("s_bfe_u32 %s, s2, 0x20003" % sr(S_NT4))
        g.I("s_lshr_b32 s5, s3, 1")
        g.I("s_lshl_b32 s5, s5, 3")
        g.I("s_add_u32 %s, s5, s4" % sr(S_OPPAIR))
        g.I("s_add_u32 %s, s4, %s" % (sr(S_RT), sr(S_NT4)))
    g.I("s_mov_b32 %s, 0x%08x" % (sr(S_SCALE), f32bits(SCALE)))
    g.I("s_mov_b32 %s, 0x%08x" % (sr(S_SCALE + 1), f32bits(SCALE)))
    g.I("s_mov_b32 %s, 0x%08x" % (sr(S_THR), f32bits(2.0 ** 40)))
    g.I("s_mul_i32 s6, %s, %d" % (sr(S_BB), REG))
    g.I("s_mul_i32 %s, %s, 6144" % (sr(S_KVD), sr(S_QH)))
    g.I("s_add_u32 %s, %s, s6" % (sr(S_KVD), sr(S_KVD)))
    g.I("s_mul_i32 %s, %s, 10240" % (sr(S_XD), sr(S_QH)))
    g.I("s_add_u32 %s, %s, s6" % (sr(S_XD), sr(S_XD)))
    g.I("s_mul_i32 %s, %s, 3072" % (sr(S_WD), sr(S_WV)))
    g.I("s_mul_i32 %s, %s, 5120" % (sr(S_ODST), sr(S_WV)))
    g.I("s_mul_i32 %s, %s, %d" % (sr(S_WK), sr(S_ROT), 64 * 12288))
    g.I("s_lshl_b32 %s, %s, 7" % (sr(S_XU), sr(S_ROT)))
    g.I("s_and_b32 s4, %s, 15" % sr(S_PAIR))
    g.I("s_mul_i32 %s, s4, 204800" % sr(S_XBASE))
    g.I("s_mul_i32 s4, %s, %d" % (sr(S_QH), 80 * 1280))
    g.I("s_add_u32 %s, %s, s4" % (sr(S_XBASE), sr(S_XBASE)))
    g.I("s_mov_b32 %s, %s" % (sr(S_XSRC), sr(S_XBASE)))
    g.I("s_mov_b32 %s, 0x%x" % (sr(S_SIGW), OOB))
    g.I("s_mov_b32 %s, 0x%x" % (sr(S_OOFF), OOB))
    g.I("s_mul_i32 %s, %s, %d" % (sr(S_CW), sr(S_OPPAIR), CNT_STRIDE))
    g.I("s_add_u32 %s, %s, %d" % (sr(S_CW), sr(S_CW), CNT_OFF))
    g.I("s_mov_b32 %s, 0" % sr(S_SIGV))
    if OPT["stamps"]:
        g.I("s_mov_b32 s57, s80")
    if OPT.get("alleven"):
        g.I("s_lshr_b32 s3, %s, 3" % sr(S_PC))
        g.I("s_lshl_b32 s3, s3, 3")
        g.I("s_add_u32 %s, %s, s3" % (sr(S_H0), sr(S_H0)))
        g.I("s_mov_b32 %s, 0" % sr(S_PC))
    g.I("s_cmp_eq_u32 %s, 0" % sr(S_PC))
    g.branch("s_cbranch_scc1 L_init_even")
    if OPT.get("onlyeven"):
        g.I("s_endpgm")
    set_wsrc(g, 2)
    set_att(g, 2)
    g.branch("s_branch L_init_done")
    g.label("L_init_even", flush=False)
    set_wsrc(g, 0)
    set_att(g, 0)
    g.label("L_init_done", flush=False)
    l3, l7 = T[5], T[6]
    g.I("v_lshrrev_b32 %s, 3, %s" % (vr(l3), vr(LANE)))
    g.I("v_and_b32 %s, 7, %s" % (vr(l7), vr(LANE)))
    for k in range(3):
        rho, lc = T[0], T[1]
        emit_rho(g, rho, lc, l3, k, T[2])
        d = voffW[k]
        g.I("v_lshrrev_b32 %s, 2, %s" % (vr(T[2]), vr(rho)))
        g.I("v_lshlrev_b32 %s, 3, %s" % (vr(T[2]), vr(T[2])))
        g.I("v_and_b32 %s, 3, %s" % (vr(T[3]), vr(rho)))
        g.I("v_add_u32 %s, %s, %s" % (vr(T[2]), vr(T[2]), vr(T[3])))
        g.I("v_mul_u32_u24 %s, 12288, %s" % (vr(d), vr(T[2])))
        g.I("v_lshl_add_u32 %s, %s, 7, %s" % (vr(d), vr(lc), vr(d)))
        g.I("v_xor_b32 %s, %s, %s" % (vr(T[2]), vr(l7), vr(rho)))
        g.I("v_lshl_add_u32 %s, %s, 4, %s" % (vr(d), vr(T[2]), vr(d)))
        if k:
            g.I("v_subrev_u32 %s, %d, %s" % (vr(d), 1024 * k, vr(d)))
        d = voffKV[k]
        g.I("v_lshlrev_b32 %s, 7, %s" % (vr(d), vr(l3)))
        g.I("v_lshl_add_u32 %s, %s, 4, %s" % (vr(d), vr(T[2]), vr(d)))
    g.I("v_mul_u32_u24 %s, 1280, %s" % (vr(voffX[0]), vr(l3)))
    g.I("v_xor_b32 %s, %s, %s" % (vr(T[2]), vr(l7), vr(l3)))
    g.I("v_lshl_add_u32 %s, %s, 4, %s" % (vr(voffX[0]), vr(T[2]), vr(voffX[0])))
    for k in range(1, 4):
        g.I("v_add_u32 %s, %d, %s" % (vr(voffX[k]), 9216 * k, vr(voffX[0])))

    def qp_first():
        for o in dma_W(g, 0) + dma_X(g, 0) + dma_W(g, 1) + dma_W(g, 2) + dma_X(g, 1):
            do_op(g, o)

    qp_first()
    for e in range(4):
        emit_aV(g, aW[e], e, LANE, T[0], T[1], T[2], VB)
        g.I("v_add_u32 %s, s6, %s" % (vr(aV[e]), vr(aW[e])))
    for s in range(2):
        emit_aRow(g, aX[s], s, 128, LANE, T[0], T[1])
        g.I("v_add_u32 %s, %s, %s" % (vr(aX[s]), sr(S_XD), vr(aX[s])))
        emit_aRow(g, aK[s], s, 384, LANE, T[0], T[1])
        g.I("v_add_u32 %s, s6, %s" % (vr(aK[s]), vr(aK[s])))
    g.I("v_lshlrev_b32 %s, 4, %s" % (vr(voffO), vr(LANE)))
    g.I("s_mul_i32 s4, %s, 5120" % sr(S_QH))
    g.I("v_add_u32 %s, s4, %s" % (vr(voffO), vr(voffO)))
    g.I("v_cmp_eq_u32 vcc, 0, %s" % vr(LANE))
    g.I("v_mov_b32 %s, 0x%x" % (vr(vSIG), OOB))
    g.I("v_cndmask_b32 %s, %s, 0, vcc" % (vr(vSIG), vr(vSIG)))
    if OPT["stamps"]:
        g.I("v_mov_b32 v207, s57")
        g.I("s_lshl_b32 s79, s2, 2")
        g.I("s_add_u32 s79, s79, %s" % sr(S_WV))
        g.I("s_lshl_b32 s79, s79, 8")
        g.I("s_add_u32 s79, s79, %d" % ((126 << 20) + 4 * 6))
        g.I("buffer_store_dword v207, %s, %s, s79 offen" % (vr(vSIG), sr(S_O, 4)))
        g.vm.pop()
        sv0 = S_PC
        g.I("s_memrealtime s[78:79]")
        g.I("s_waitcnt lgkmcnt(0)")
        g.I("v_mov_b32 v207, s78")
        g.I("s_lshl_b32 s79, s2, 2")
        g.I("s_add_u32 s79, s79, %s" % sr(S_WV))
        g.I("s_lshl_b32 s79, s79, 8")
        g.I("s_add_u32 s79, s79, %d" % ((126 << 20) + 4 * 7))
        g.I("buffer_store_dword v207, %s, %s, s79 offen" % (vr(vSIG), sr(S_O, 4)))
        g.vm.pop()
    if OPT.get("tlbpf"):
        step = OPT.get("tlbpf")
        g.I("v_and_b32 %s, 31, %s" % (vr(T[0]), vr(LANE)))
        g.I("v_mul_u32_u24 %s, 6144, %s" % (vr(T[0]), vr(T[0])))
        g.I("v_lshrrev_b32 %s, 5, %s" % (vr(T[1]), vr(LANE)))
        g.I("s_cmp_eq_u32 %s, 0" % sr(S_PC))
        g.I("s_cselect_b32 s3, %d, 0" % (32 * 196608))
        g.I("s_sub_u32 s3, s3, %d" % (8 * 196608))
        g.I("v_mul_lo_u32 %s, %s, s3" % (vr(T[1]), vr(T[1])))
        g.I("v_add3_u32 %s, %s, %s, %s" % (vr(T[0]), vr(T[0]), vr(T[1]), sr(S_KVCUR)))
        g.I("s_cmp_eq_u32 %s, 0" % sr(S_QH))
        g.branch("s_cbranch_scc1 L_tlb_k")
        g.I("buffer_load_dword %s, %s, %s, 0 offen nt" % (vr(T[2]), vr(T[0]), sr(S_V, 4)))
        g.vm.pop()
        g.branch("s_branch L_tlb_d")
        g.label("L_tlb_k", flush=False)
        g.I("buffer_load_dword %s, %s, %s, 0 offen nt" % (vr(T[2]), vr(T[0]), sr(S_K, 4)))
        g.vm.pop()
        g.label("L_tlb_d", flush=False)
    g.I("s_or_b32 s3, s2, %s" % sr(S_WV))
    g.I("s_cmp_lg_u32 s3, 0")
    g.branch("s_cbranch_scc1 L_qp_wait")
    sv = g.snapshot()
    g.I("v_mul_u32_u24 %s, %d, %s" % (vr(T[0]), CNT_STRIDE, vr(LANE)))
    g.I("v_mov_b32 %s, 0" % vr(T[1]))
    g.I("s_mov_b32 s3, %d" % CNT_OFF)
    g.I("buffer_store_dword %s, %s, %s, s3 offen sc1" % (vr(T[1]), vr(T[0]), sr(S_O, 4)))
    g.I("v_mov_b32 %s, 1" % vr(vSIGD))
    g.wait_all()
    g.I("buffer_atomic_add %s, %s, %s, 0 offen sc1" % (vr(vSIGD), vr(vSIG), sr(S_DBG, 4)))
    g.lgkm, g.vm = sv

    g.label("L_qp_wait")
    g.wait_all()
    g.vm = [(("W", 1), set())] * 3 + [(("W", 2), set())] * 3 + [(("X", 1), set())] * 10 + [("st", set())] * 30
    qp_vm = [t for t, d in g.vm]
    g.label("L_qp_go", flush=False)
    g.barrier()
    st(g, 0)
    ph = qp_phase(0)
    for qt in range(5):
        g.I(rd_B(0, qt))
    for n in range(4):
        for o in ph.reads[n](FB[n]):
            g.I(o)
    dq = []
    m0_, r0_ = qk_groups(0, 0, 2, True)
    qk0 = Phase(m0_, r0_)

    def att_first_dmas():
        return [dma_KV(g, "K", 0) + dma_KV(g, "V", 0), dma_KV(g, "V", 1), dma_KV(g, "K", 1) + dma_KV(g, "K", 2)]

    gp = [-99]
    lazy = []
    tsig = [3]
    finq = []
    for t in range(20):
        nxt = qp_phase(t + 1) if t < 19 else None
        extra = []
        if t < 19:
            extra = [(8, 11, [rd_B(t + 1, qt) for qt in range(5)])]
        late = []
        if t + 3 <= 19:
            late += dma_W(g, t + 3)
        if t % 2 == 1 and (t >> 1) + 2 <= 9:
            late += dma_X(g, (t >> 1) + 2, 0)
        if t % 2 == 0 and t >= 2 and (t >> 1) + 1 <= 9:
            late = dma_X(g, (t >> 1) + 1, 1) + late
        if t >= 17:
            late += att_first_dmas()[t - 17]
        if OPT.get("l2pf") and 0 <= t - OPT.get("l2t", 10) < 2 * OPT.get("l2pf"):
            n = t - OPT.get("l2t", 10)
            which, blk = n & 1, n >> 1
            off = (3 if which == 0 else 2) * SLOT + blk * 16384
            late += ["v_lshlrev_b32 %s, 7, %s" % (vr(T[5]), vr(LANE)),
                     "s_mul_i32 %s, %s, %d" % (sr(S_T2), sr(S_QH), 8192 - 6144),
                     "s_add_u32 %s, %s, %s" % (sr(S_T2), sr(S_T2), sr(S_KVCUR)),
                     "s_add_u32 %s, %s, %d" % (sr(S_T2), sr(S_T2), off),
                     (1, lambda which=which: g.I("buffer_load_dword %s, %s, %s, %s offen%s" % (vr(T[6]), vr(T[5]), sr(S_V if which else S_K, 4), sr(S_T2), " nt" if OPT.get("l2nt") else ""), tag="l2"), "vmem")]

        def bop(t=t, late=late):
            assert not dq, "DMA queue not drained before barrier"
            tags = {("W", t + 1), ("X", (t + 1) >> 1)}
            sig = []
            if tsig[0] == t:
                tags.add("st")
                sig = signal_ops(g)
            g.wait_vm_tags(tags, also_lgkm0=True)
            g.barrier()
            dq.extend(sig + late)
        lz = lazy
        if t == 19:
            finq = fin_ops(0) + fin_ops(1)
            n0 = len(fin_ops(0))
            lz = GatedList(finq, [(3, n0), (5, len(finq))])
        run_phase(g, ph, nxt, barrier_op=(2, bop), extra=extra, dmaq=dq, dma_gap=(3 if t in (0, 17, 18, 19) else OPT.get("qpgap", 5)), gap0=gp,
                  lazy=(lz if t > 0 else None))
        if not lazy and tsig[0] is None:
            tsig[0] = t + 2
        ph = nxt
    finq = list(lz.rest())
    for o in dq:
        do_op(g, o)
    dq.clear()
    st(g, 1)
    g.I("s_add_u32 %s, %s, 1" % (sr(S_PC), sr(S_PC)))
    att_vm = [t for t, d in g.vm]
    assert not g.lgkm

    def att_setup():
        g.I("s_mov_b32 %s, %s" % (sr(S_OOFF), sr(S_NOOFF)))
        g.I("s_mov_b32 %s, %s" % (sr(S_CSIG), sr(S_NSIG)))
        g.I("s_mov_b32 %s, 0" % sr(S_PASS))
        for qt in range(5):
            g.I("v_mov_b32 %s, 0xff800000" % vr(MG + qt))
        if OPT.get("rot3") == 2:
            g.I("s_mul_i32 s3, %s, 13" % sr(S_ROT))
            g.I("s_lshr_b32 s3, s3, 5")
            g.I("s_and_b32 s3, s3, 1")
            g.I("s_sub_u32 %s, %s, s3" % (sr(S_ROT), sr(S_ROT)))
            g.I("s_mul_i32 %s, %s, %d" % (sr(S_WK), sr(S_ROT), 64 * 12288))
            g.I("s_lshl_b32 %s, %s, 7" % (sr(S_XU), sr(S_ROT)))
        set_wsrc(g, 3)
        g.I("s_cmp_eq_u32 %s, 9" % sr(S_PC))
        g.I("s_cselect_b32 s3, %d, 0" % (16 * 384))
        g.I("s_sub_u32 %s, %s, s3" % (sr(S_WSRC), sr(S_WSRC)))
        g.I("s_and_b32 s3, %s, 7" % sr(S_PC))
        g.I("s_cmp_eq_u32 s3, 1")
        g.I("s_cselect_b32 %s, %s, 0x%x" % (sr(S_WSRC), sr(S_WSRC), OOB))
        g.I("s_cselect_b32 %s, %s, 0x%x" % (sr(S_XSRC), sr(S_XBASE), OOB))

    def att_go(ph0):
        for qt in range(5):
            g.I("v_mov_b32 %s, 0" % vr(L + qt))
        g.wait_vm_tags({("K", 0)}, also_lgkm0=True)
        g.barrier()
        st(g, 2)
        for n in range(4):
            for o in ph0.reads[n](FB[n]):
                g.I(o)

    att_setup()
    for o in finq:
        g.I(o)
    for o in fin_ops(2, pk=True) + fin_ops(3, pk=True) + fin_ops(4, pk=True):
        g.I(o)
    m1_, r1_ = qk_groups(0, 0, 2, True, ksmajor=True)
    qk0f = Phase(m1_, r1_)
    att_go(qk0f)
    it = [att_phase(j) for j in range(15)]
    mP, rP = pv_groups(15, 1, False)
    last = Phase(mP, rP)

    def mkbar(tags, late):
        def bop():
            assert not dq, "DMA queue not drained before barrier"
            if OPT.get("novmwait"):
                n0 = len(g.out)
                g.wait_vm_tags(tags)
                del g.out[n0:]
                g.wait_lgkm0()
            else:
                g.wait_vm_tags(tags, also_lgkm0=True)
            if not OPT.get("nobar"):
                g.barrier()
            dq.extend(late())
        return (2, bop)

    def qk0_run(ph0, extra):
        run_phase(g, ph0, it[0], barrier_op=mkbar({("K", 1)}, lambda: dma_KV(g, "K", 3) + dma_KV(g, "V", 2)), dmaq=dq, dma_gap=3, extra=extra)
        for o in dq:
            do_op(g, o)
        dq.clear()

    qk0_run(qk0f, [(0, 9, fin_ops(5))])
    sm0_state = g.snapshot()
    g.label("L_att_sm0")
    for qt in range(5):
        m, t1 = T[2 * (qt & 1)], T[2 * (qt & 1) + 1]
        s0, s1 = G(0, qt), G(2, qt)
        g.I("v_max3_f32 %s, %s, %s, %s" % (vr(m), vr(s0), vr(s0 + 1), vr(s0 + 2)))
        g.I("v_max3_f32 %s, %s, %s, %s" % (vr(m), vr(m), vr(s0 + 3), vr(s1)))
        g.I("v_max3_f32 %s, %s, %s, %s" % (vr(m), vr(m), vr(s1 + 1), vr(s1 + 2)))
        g.I("v_max3_f32 %s, %s, %s, %s" % (vr(m), vr(m), vr(s1 + 3), vr(MG + qt)))
        g.I("v_mov_b32 %s, %s" % (vr(t1), vr(m)))
        g.I("v_permlane32_swap_b32 %s, %s" % (vr(m), vr(t1)))
        g.I("v_max_f32 %s, %s, %s" % (vr(m), vr(m), vr(t1)))
        g.I("v_mov_b32 %s, %s" % (vr(t1), vr(m)))
        g.I("v_permlane16_swap_b32 %s, %s" % (vr(m), vr(t1)))
        g.I("v_max_f32 %s, %s, %s" % (vr(m), vr(m), vr(t1)))
        for r in range(4):
            g.I("v_sub_f32 %s, 0, %s" % (vr(NM(qt) + r), vr(m)))
        for r in range(4):
            g.I("v_sub_f32 %s, %s, %s" % (vr(s0 + r), vr(s0 + r), vr(m)))
            g.I("v_sub_f32 %s, %s, %s" % (vr(s1 + r), vr(s1 + r), vr(m)))
    NDEF = OPT.get("ndef", 2)
    for o in interleave_sm([softmax_ops(0, 2, 0, qt) for qt in range(5)] + [softmax_ops(0, 2, 1, qt) for qt in range(5 - NDEF)]):
        g.I(o)

    gpa = [-99]

    def iteration(j, nxt, lateA, lateB, ndef=NDEF, gap=None):
        a = (j + 1) & 1
        tl = [(0, 5, softmax_ops(j & 1, 2, 1, qt)) for qt in range(5 - NDEF, 5)]
        tl += [(7, 23, softmax_ops(a, 2, 0, qt)) for qt in range(5)]
        tl += [(13, 23, softmax_ops(a, 2, 1, qt)) for qt in range(5 - ndef)]
        run_phase(g, it[j], nxt, barrier_op=mkbar({("K", j + 2)} if j < 14 else {("V", 15)}, lateB), mid={8: mkbar({("V", j), ("K", 16 if j == 14 else -1)}, lateA)},
                  dmaq=dq, tiles=tl, dma_gap=gap or OPT.get("attgap", 26 if OPT.get("kvburst") else 9), gap0=gpa)

    def kA(j):
        def clamp():
            g.I("s_cmp_eq_u32 %s, 1" % sr(S_CNT))
            g.I("s_cselect_b32 %s, 0x%x, %s" % (sr(S_KSRC), OOB, sr(S_KSRC)))
        return lambda: ((signal_ops(g) if j == 2 else []) + ([(2, clamp)] if j == 6 else []) + dma_KV(g, "K", j + 4))

    def vB(j):
        return lambda: dma_KV(g, "V", j + 3)

    iteration(0, it[1], kA(0), vB(0))
    g.I("s_mov_b32 %s, 0" % sr(S_CNT))
    g.vm = [(("V", 1), set()) for _ in range(6)] + g.vm
    snap = g.snapshot()
    ndq, gp0 = len(dq), gpa[0]
    g.label("L_att_loop")
    for j in range(1, 7):
        iteration(j, it[j + 1], kA(j), vB(j))
    snap2 = g.snapshot()
    assert snap[0] == snap2[0], (snap[0], snap2[0])
    assert [(t[0], t[1] + 6) for t, d in snap[1]] == [t for t, d in snap2[1]], (snap[1], snap2[1])
    assert ndq == len(dq) and gp0 == gpa[0]
    g.I("s_add_u32 %s, %s, 1" % (sr(S_CNT), sr(S_CNT)))
    g.I("s_cmp_lt_u32 %s, 2" % sr(S_CNT))
    g.branch("s_cbranch_scc1 L_att_loop")
    g.vm = [((t[0], t[1] + 6), d) for t, d in g.vm]
    TAGOFF[0] = 6
    def code_touch():
        def f():
            g.I("s_getpc_b64 s[78:79]")
            g.raw("L_ct_here:")
            g.I("s_lshl_b32 s3, %s, 13" % sr(S_WV))
            g.I("s_add_u32 s3, s3, L_zf_ok-L_ct_here")
            g.I("s_min_u32 s3, s3, L_exit-L_ct_here-8192")
            g.I("s_add_u32 s78, s78, s3")
            g.I("s_addc_u32 s79, s79, 0")
            g.I("v_lshlrev_b32 %s, 7, %s" % (vr(T[5]), vr(LANE)))
            g.I("v_mov_b32 %s, s79" % vr(T[6]))
            g.I("v_add_co_u32 %s, vcc, s78, %s" % (vr(T[5]), vr(T[5])))
            g.I("v_addc_co_u32 %s, vcc, 0, %s, vcc" % (vr(T[6]), vr(T[6])))
        return [(2, f), (1, lambda: g.I("global_load_dword %s, %s, off" % (vr(T[7]), vr(T[5], 2)), tag="ct"), "vmem")]

    iteration(13, it[14], lambda: (code_touch() if OPT.get("codepf") else []), lambda: dma_W(g, 0))
    TAGOFF[0] = 0
    zf = ["v_mov_b32 %s, 0" % vr(T[9]),
          (1, lambda: g.I("buffer_load_dword %s, %s, %s, 0 offen sc1" % (vr(T[8]), vr(T[9]), sr(S_DBG, 4)), tag="zf"), "vmem"),
          (1, lambda: g.I("buffer_load_dword %s, %s, %s, %s offen sc1" % (vr(T[10]), vr(T[9]), sr(S_O, 4), sr(S_CW)), tag="zf"), "vmem")]
    iteration(14, last, lambda: zf + dma_X(g, 0, 0), lambda: dma_X(g, 0, 1) + dma_W(g, 1), ndef=0)
    fin = []
    for qt in range(5):
        l, t1 = L + qt, T[qt]
        fin.append(["v_mov_b32 %s, %s" % (vr(t1), vr(l)),
                    "v_permlane32_swap_b32 %s, %s" % (vr(l), vr(t1)),
                    "v_add_f32 %s, %s, %s" % (vr(l), vr(l), vr(t1)),
                    "v_mov_b32 %s, %s" % (vr(t1), vr(l)),
                    "v_permlane16_swap_b32 %s, %s" % (vr(l), vr(t1)),
                    "v_add_f32 %s, %s, %s" % (vr(l), vr(l), vr(t1)),
                    "v_cmp_nle_f32 %s, %s, %s" % (("s[78:79]", "vcc")[qt & 1], vr(l), sr(S_THR)),
                    ])
    finl = []
    for k in range(6):
        for qt in range(5):
            finl.append(fin[qt][k])
    finl.append("s_mov_b64 s[82:83], 0")
    for qt in range(5):
        finl.append(fin[qt][6])
        finl.append("v_rcp_f32 %s, %s" % (vr(NM(0) + 2 * qt), vr(L + qt)))
        finl.append("s_or_b64 s[82:83], s[82:83], %s" % ("s[78:79]", "vcc")[qt & 1])
    for qt in range(5):
        finl.append("v_mov_b32 %s, %s" % (vr(NM(0) + 2 * qt + 1), vr(NM(0) + 2 * qt)))
    finl.append("s_or_b32 s82, s82, s83")
    finl.append("s_lshl_b32 s83, %s, 2" % sr(S_WV))
    finl.append("s_add_u32 s83, s83, %d" % FLAG)
    finl.append("v_mov_b32 %s, s82" % vr(T[0]))
    finl.append("v_mov_b32 %s, s83" % vr(T[1]))
    finl.append("ds_write_b32 %s, %s" % (vr(T[1]), vr(T[0])))
    finl.append("v_mov_b32 %s, %d" % (vr(T[1]), FLAG))
    run_phase(g, last, None, dmaq=dq, valu=[(0, finl)], dma_gap=3)
    for o in dq:
        do_op(g, o)
    dq.clear()
    g.wait_lgkm0()
    g.barrier()
    g.I("ds_read_b128 v[248:251], %s" % vr(T[1]))
    g.I("v_or3_b32 v248, v248, v249, v250")
    g.I("v_or_b32 v248, v248, v251")
    g.I("v_readfirstlane_b32 s82, v248")
    g.I("s_cmp_eq_u32 %s, 1" % sr(S_PASS))
    g.I("s_cselect_b32 s82, 0, s82")
    g.I("s_cmp_lg_u32 s82, 0")
    g.branch("s_cbranch_scc1 L_slow")
    st(g, 3)
    g.I("v_readfirstlane_b32 s3, %s" % vr(T[8]))
    g.I("s_cmp_lg_u32 s3, 0")
    g.branch("s_cbranch_scc1 L_zf_ok")
    sv = g.snapshot()
    g.I("s_mov_b32 s78, 0")
    g.label("L_zf")
    g.I("s_sleep 32")
    g.I("buffer_load_dword %s, %s, %s, 0 offen sc1" % (vr(T[8]), vr(T[9]), sr(S_DBG, 4)))
    g.I("v_readfirstlane_b32 s3, %s" % vr(T[8]))
    g.I("s_cmp_lg_u32 s3, 0")
    g.branch("s_cbranch_scc1 L_zf_ok")
    g.I("s_add_u32 s78, s78, 1")
    g.I("s_cmp_lt_u32 s78, %d" % OPT.get("spin", 1000000))
    g.branch("s_cbranch_scc1 L_zf")
    g.lgkm, g.vm = sv
    g.label("L_zf_ok")
    g.I("s_mov_b32 %s, %s" % (sr(S_SIGV), sr(S_CSIG)))
    g.I("s_mul_i32 %s, %s, %d" % (sr(S_SIGW), sr(S_PAIR), CNT_STRIDE))
    g.I("s_add_u32 %s, %s, %d" % (sr(S_SIGW), sr(S_SIGW), CNT_OFF))
    g.I("s_add_u32 %s, %s, 1" % (sr(S_PC), sr(S_PC)))
    g.I("v_readfirstlane_b32 %s, %s" % (sr(S_TRIP), vr(T[10])))
    g.I("s_and_b32 s3, %s, 7" % sr(S_PC))
    g.I("s_cmp_lg_u32 s3, 2")
    g.branch("s_cbranch_scc1 L_op")
    for o in dma_W(g, 2) + dma_X(g, 1):
        do_op(g, o)
    for o in drain_ops(g, range(6), pk=True):
        do_op(g, o)
    g.I("s_cmp_eq_u32 %s, 10" % sr(S_PC))
    g.branch("s_cbranch_scc1 L_next1")
    set_att(g, 3)
    g.branch("s_branch L_next3")
    g.label("L_next1", flush=False)
    set_att(g, 1)
    g.label("L_next3", flush=False)
    g.wait_vm_tags({("W", 0), ("X", 0)}, also_lgkm0=True)
    assert [t for t, d in g.vm] == qp_vm, ([t for t, d in g.vm], qp_vm)
    g.branch("s_branch L_qp_go")

    reset(g)
    g.vm = [(t, set()) for t in att_vm[-30:]]
    g.label("L_att_entry", flush=False)
    att_setup()
    g.label("L_att")
    att_go(qk0)
    qk0_run(qk0, [])
    now = g.snapshot()
    assert now[0] == sm0_state[0], (now[0], sm0_state[0])
    assert [t for t, d in now[1]] == [t for t, d in sm0_state[1]], (now[1], sm0_state[1])
    g.branch("s_branch L_att_sm0")

    reset(g)
    g.label("L_slow", flush=False)
    g.I("s_mov_b32 %s, 1" % sr(S_PASS))
    g.wait_all()
    g.barrier()
    g.I("s_mul_i32 %s, %s, %d" % (sr(S_WK), sr(S_ROT), 64 * 12288))
    g.I("s_lshl_b32 %s, %s, 7" % (sr(S_XU), sr(S_ROT)))
    g.I("s_mov_b32 %s, %s" % (sr(S_KSRC), sr(S_KVCUR)))
    g.I("s_mov_b32 %s, 0" % sr(S_CNT))
    g.label("L_slow_loop")
    for o in dma_KV(g, "K", 0):
        do_op(g, o)
    g.wait_all()
    g.barrier()
    for n in range(12):
        for o in qk0.reads[n](FB[n % 6]):
            g.I(o)
        for m in qk0.mfmas[n](FB[n % 6]):
            g.I(m)
    for qt in range(5):
        for s in (G(0, qt), G(2, qt)):
            g.I("v_max3_f32 %s, %s, %s, %s" % (vr(MG + qt), vr(MG + qt), vr(s), vr(s + 1)))
            g.I("v_max3_f32 %s, %s, %s, %s" % (vr(MG + qt), vr(MG + qt), vr(s + 2), vr(s + 3)))
    g.wait_lgkm0()
    g.barrier()
    g.I("s_add_u32 %s, %s, 1" % (sr(S_CNT), sr(S_CNT)))
    g.I("s_cmp_lt_u32 %s, 16" % sr(S_CNT))
    g.branch("s_cbranch_scc1 L_slow_loop")
    g.I("s_mov_b32 %s, %s" % (sr(S_KSRC), sr(S_KVCUR)))
    g.I("s_mov_b32 %s, %s" % (sr(S_VSRC), sr(S_KVCUR)))
    for lst in att_first_dmas():
        for o in lst:
            do_op(g, o)
    now = [t for t, d in g.vm]
    assert att_vm[-len(now):] == now, (att_vm, now)
    g.branch("s_branch L_att")

    STG = 40960
    AC = lambda nt, qt: 20 * nt + 4 * qt
    voffA = [100, 101, 102, 103, 104]
    voffB, voffB2 = 105, 112
    aA = [[106, 107], [108, 109]]
    aB = [110, 111]
    reset(g)
    g.label("L_op", flush=False)
    st(g, 4)
    if OPT.get("onlyeven") or OPT.get("alleven"):
        st(g, 5)
        st(g, 6)
        st(g, 7)
        g.I("s_endpgm")
    NO = OPT.get("no", 12)
    if OPT.get("xmap"):
        g.I("s_bitcmp1_b32 s2, 0")
        g.I("s_cselect_b32 %s, 4, 12" % sr(S_PC))
    g.I("s_mov_b32 %s, %d" % (sr(S_N), NO))
    g.I("s_mov_b32 %s, 5" % sr(S_BND))
    g.I("s_mov_b32 s6, 0")
    g.I("s_mov_b32 %s, 0xff" % sr(S_C0))
    g.I("s_mov_b32 %s, 0x88" % sr(S_C1))
    g.I("s_mov_b32 %s, 0xf00" % sr(S_M2))
    g.I("s_mov_b32 %s, 0x800" % sr(S_V2))
    g.I("s_cmp_eq_u32 %s, 4" % sr(S_PC))
    g.I("s_cselect_b32 s6, %d, s6" % (4 * NO))
    g.I("s_cselect_b32 %s, %d, %s" % (sr(S_N), 24 - NO, sr(S_N)))
    g.I("s_cselect_b32 %s, %d, %s" % (sr(S_BND), 18 - NO - 1, sr(S_BND)))
    g.I("s_cselect_b32 %s, 0xff0000, %s" % (sr(S_C0), sr(S_C0)))
    g.I("s_cselect_b32 %s, 0x880000, %s" % (sr(S_C1), sr(S_C1)))
    g.I("s_cselect_b32 %s, 0xf000000, %s" % (sr(S_M2), sr(S_M2)))
    g.I("s_cselect_b32 %s, 0x8000000, %s" % (sr(S_V2), sr(S_V2)))
    g.I("s_mov_b32 s78, 0")
    g.label("L_op_w1")
    g.I("s_and_b32 s3, %s, %s" % (sr(S_TRIP), sr(S_C0)))
    g.I("s_cmp_eq_u32 s3, %s" % sr(S_C1))
    g.branch("s_cbranch_scc1 L_op_w1ok")
    g.I("s_sleep %d" % OPT.get("sleep", 16))
    g.I("buffer_load_dword %s, %s, %s, %s offen sc1" % (vr(T[10]), vr(T[9]), sr(S_O, 4), sr(S_CW)))
    g.I("v_readfirstlane_b32 %s, %s" % (sr(S_TRIP), vr(T[10])))
    g.I("s_add_u32 s78, s78, 1")
    g.I("s_cmp_lt_u32 s78, %d" % OPT.get("spin", 1000000))
    g.branch("s_cbranch_scc1 L_op_w1")
    g.label("L_op_w1ok", flush=False)
    if OPT.get("inv"):
        g.I("buffer_inv sc1")
    g.I("s_mul_i32 %s, s6, %d" % (sr(S_ASRC), 64 * 1280))
    g.I("s_mul_i32 s7, %s, %d" % (sr(S_WV), 16 * 1280))
    g.I("s_add_u32 %s, %s, s7" % (sr(S_ASRC), sr(S_ASRC)))
    g.I("s_mul_i32 s7, %s, 320" % sr(S_NT4))
    g.I("s_add_u32 %s, %s, s7" % (sr(S_ASRC), sr(S_ASRC)))
    g.I("s_mul_i32 %s, %s, %d" % (sr(S_BSRC), sr(S_OPPAIR), 192 * 10240))
    g.I("s_mul_i32 s6, s6, 20480")
    g.I("s_add_u32 %s, %s, s6" % (sr(S_BSRC), sr(S_BSRC)))
    g.I("s_add_u32 %s, %s, %s" % (sr(S_BSRC), sr(S_BSRC), sr(S_ODST)))
    for i in range(5):
        g.I("v_add_u32 %s, %d, %s" % (vr(T[0]), 64 * i, vr(LANE)))
        g.I("v_mul_u32_u24 %s, 205, %s" % (vr(T[1]), vr(T[0])))
        g.I("v_lshrrev_b32 %s, 12, %s" % (vr(T[1]), vr(T[1])))
        g.I("v_mul_u32_u24 %s, 20, %s" % (vr(T[2]), vr(T[1])))
        g.I("v_sub_u32 %s, %s, %s" % (vr(T[2]), vr(T[0]), vr(T[2])))
        g.I("v_lshrrev_b32 %s, 1, %s" % (vr(T[3]), vr(T[1])))
        g.I("v_and_b32 %s, 2, %s" % (vr(T[3]), vr(T[3])))
        g.I("v_xor_b32 %s, %s, %s" % (vr(T[2]), vr(T[2]), vr(T[3])))
        g.I("v_mul_u32_u24 %s, 1280, %s" % (vr(voffA[i]), vr(T[1])))
        g.I("v_lshl_add_u32 %s, %s, 4, %s" % (vr(voffA[i]), vr(T[2]), vr(voffA[i])))
        if 0 < i < 4:
            g.I("v_subrev_u32 %s, %d, %s" % (vr(voffA[i]), 1024 * i, vr(voffA[i])))
    g.I("v_lshlrev_b32 %s, 4, %s" % (vr(voffB), vr(LANE)))
    g.I("v_add_u32 %s, 4096, %s" % (vr(voffB2), vr(voffB)))
    if OPT.get("linA"):
        for i in range(4):
            g.I("v_mov_b32 %s, %s" % (vr(voffA[i]), vr(voffB)))
        g.I("v_mov_b32 %s, %s" % (vr(voffA[4]), vr(voffB2)))
        g.I("s_mul_i32 s7, %s, %d" % (sr(S_NT4), 5120 - 320))
        g.I("s_add_u32 %s, %s, s7" % (sr(S_ASRC), sr(S_ASRC)))
    if OPT.get("oprot0"):
        g.I("s_mov_b32 %s, 0" % sr(S_RT))
    g.I("v_lshrrev_b32 %s, 2, %s" % (vr(T[0]), vr(LANE)))
    g.I("v_mul_u32_u24 %s, 320, %s" % (vr(T[1]), vr(T[0])))
    g.I("v_and_b32 %s, 3, %s" % (vr(T[0]), vr(LANE)))
    g.I("v_lshl_add_u32 %s, %s, 3, %s" % (vr(T[1]), vr(T[0]), vr(T[1])))
    g.I("s_mul_i32 s7, %s, 160" % sr(S_BB))
    g.I("v_add_u32 %s, s7, %s" % (vr(T[1]), vr(T[1])))
    g.I("v_and_b32 %s, 16, %s" % (vr(T[0]), vr(LANE)))
    g.I("v_lshlrev_b32 %s, 1, %s" % (vr(T[0]), vr(T[0])))
    g.I("s_lshl_b32 s7, %s, 1" % sr(S_BB))
    g.I("s_sub_u32 s7, 1, s7")
    g.I("v_mul_lo_u32 %s, %s, s7" % (vr(T[0]), vr(T[0])))
    g.I("v_add_u32 %s, %s, %s" % (vr(aA[0][0]), vr(T[1]), vr(T[0])))
    g.I("v_sub_u32 %s, %s, %s" % (vr(aA[0][1]), vr(T[1]), vr(T[0])))
    for p in range(2):
        g.I("v_add_u32 %s, %d, %s" % (vr(aA[1][p]), 2 * STG, vr(aA[0][p])))
    g.I("v_add_u32 %s, 20480, %s" % (vr(aB[0]), vr(voffO)))
    g.I("v_add_u32 %s, %d, %s" % (vr(aB[1]), 2 * STG, vr(aB[0])))
    g.I("s_lshl_b32 %s, %s, 2" % (sr(S_POFF), sr(S_OPPAIR)))
    g.I("s_add_u32 %s, %s, %s" % (sr(S_POFF), sr(S_POFF), sr(S_NT4)))
    g.I("s_lshl_b32 %s, %s, 2" % (sr(S_POFF), sr(S_POFF)))
    g.I("s_add_u32 %s, %s, %s" % (sr(S_POFF), sr(S_POFF), sr(S_WV)))
    g.I("s_mul_i32 %s, %s, 25600" % (sr(S_POFF), sr(S_POFF)))
    g.I("s_add_u32 %s, %s, %d" % (sr(S_FW), sr(S_CW), 32 * CNT_STRIDE))
    g.I("s_lshl_b32 %s, %s, 3" % (sr(S_FSH), sr(S_NT4)))
    SA4, SB4 = [S_A, 26, 27, S_I], [S_B, 28, 29, S_OUTOFF]
    for k in range(4):
        g.I("s_add_u32 s3, %s, %d" % (sr(S_RT), k))
        g.I("s_and_b32 s3, s3, 3")
        g.I("s_mul_i32 %s, s3, %d" % (sr(SA4[k]), 64 * 1280))
        g.I("s_add_u32 %s, %s, %s" % (sr(SA4[k]), sr(SA4[k]), sr(S_ASRC)))
        g.I("s_mul_i32 %s, s3, 20480" % sr(SB4[k]))
        g.I("s_add_u32 %s, %s, %s" % (sr(SB4[k]), sr(SB4[k]), sr(S_BSRC)))
    S_DN = S_ASRC
    g.I("s_mov_b32 %s, %s" % (sr(S_DN), sr(S_ODST)))
    g.wait_all()
    g.barrier()
    st(g, 5)
    BUF = [0, 81920, 40960, 122880]
    FB8 = FB + [116, 200]
    vPOLL, vZ, vFLAG = 113, 114, 115
    g.I("v_mov_b32 %s, 0" % vr(vZ))
    g.I("v_mov_b32 %s, 0" % vr(vPOLL))
    g.I("v_mov_b32 %s, 0" % vr(vFLAG))
    g.I("s_mov_b32 %s, 0" % sr(S_PASS))
    g.I("s_lshl_b32 %s, 0xf0, %s" % (sr(S_C0), sr(S_FSH)))
    g.I("s_lshl_b32 %s, 64, %s" % (sr(S_C1), sr(S_FSH)))

    def pieces(i, nxt):
        k = i % 4
        b = BUF[k]
        D = S_DN if nxt else S_ODST
        out = []
        for n in range(10):
            ops = ["s_add_u32 m0, %s, %d" % (sr(D), b + (n % 5) * 1024 + (20480 if n >= 5 else 0) - (1024 * (n % 5) if (n % 5) < 4 else 0))]
            if n < 4:
                f = lambda n=n: g.I("buffer_load_dwordx4 %s, %s, %s offen offset:%d lds" % (vr(voffA[n]), sr(S_WO, 4), sr(SA4[k]), 1024 * n), tag=("L", i))
            elif n == 4:
                f = lambda: g.I("buffer_load_dwordx4 %s, %s, %s offen lds" % (vr(voffA[4]), sr(S_WO, 4), sr(SA4[k])), tag=("L", i))
            elif n < 9:
                f = lambda n=n: g.I("buffer_load_dwordx4 %s, %s, %s offen offset:%d sc1 lds" % (vr(voffB), sr(S_O, 4), sr(SB4[k]), 1024 * (n - 5)), tag=("L", i))
            else:
                f = lambda: g.I("buffer_load_dwordx4 %s, %s, %s offen sc1 lds" % (vr(voffB2), sr(S_O, 4), sr(SB4[k])), tag=("L", i))
            ops.append((1, f, "vmem"))
            if n == 4:
                ops.append("s_add_u32 %s, %s, %d" % (sr(SA4[k]), sr(SA4[k]), 4 * 64 * 1280))
            if n == 9:
                ops.append("s_add_u32 %s, %s, %d" % (sr(SB4[k]), sr(SB4[k]), 4 * 20480))
            out.append(ops)
        return out

    def flat(lst):
        out, last = [], None
        for ops in lst:
            if ops[0] == last:
                out += ops[1:]
            else:
                out += ops
            last = ops[0]
        return out

    def op_phase(i):
        k = i % 4
        hi, off = BUF[k] >= 81920, BUF[k] % 81920
        mfm, rds = [], []
        for e in range(2):
            for nt in range(5):
                mfm.append(lambda buf, e=e, nt=nt: [mf(AC(nt, qt), buf, G(e, qt)) for qt in range(5)])
                rds.append(lambda buf, e=e, nt=nt: ["ds_read_b64_tr_b16 %s, %s offset:%d" % (R(Roff(buf, 2 * ih), 2), vr(aA[hi][nt & 1]), off + e * 10240 + ih * 5120 + nt * 32) for ih in range(2)])
        return Phase(mfm, rds)

    def rd_OB(i, e, qt):
        k = i % 4
        hi, off = BUF[k] >= 81920, BUF[k] % 81920
        return "ds_read_b128 %s, %s offset:%d" % (vr(G(e, qt), 4), vr(aB[hi]), off + e * 10240 + qt * 1024)

    NM1 = OPT.get("nm1", 5)

    def late_for(i, first=False):
        k, w0 = i % 4, i - i % 4
        if first and k == 0:
            return flat(pieces(w0 + 4, True)[:NM1])
        if k == 3:
            return flat(pieces(w0 + 6, True)[:4])
        if k == 0:
            return flat(pieces(w0 + 3, False)[5:] + pieces(w0 + 4, True)[:NM1])
        if k == 1:
            pl = [(1, lambda: g.I("buffer_load_dword %s, %s, %s, %s offen sc1" % (vr(vPOLL), vr(vZ), sr(S_O, 4), sr(S_CW)), tag="pl"), "vmem"),
                  (1, lambda: g.I("buffer_load_dword %s, %s, %s, %s offen sc1" % (vr(vFLAG), vr(vZ), sr(S_O, 4), sr(S_FW)), tag="pl"), "vmem")]
            return pl + flat(pieces(w0 + 4, True)[NM1:])
        return flat(pieces(w0 + 5, True))

    gpo = [-99]

    def p1_loads():
        g.I("s_add_u32 s6, %s, %d" % (sr(S_POFF), P1_OFF))
        for n in range(25):
            if n % 4 == 0 and n:
                g.I("s_add_u32 s6, s6, 4096")
            g.I("buffer_load_dwordx4 %s, %s, %s, s6 offen offset:%d sc1" % (ar(4 * n, 4), vr(voffB), sr(S_O, 4), (n % 4) * 1024))

    def stage(i, lazy=None, more=None, first=False):
        def bop(i=i):
            assert not dq
            tags = {("L", i + 1)}
            if first and i == OPT.get("sigk", 1):
                tags.add("st")
            g.wait_vm_tags(tags, also_lgkm0=True)
            g.barrier()
            if not first and i % 4 == 1:
                sv3 = g.snapshot()
                g.I("v_readfirstlane_b32 s3, %s" % vr(vFLAG))
                g.I("s_and_b32 s3, s3, %s" % sr(S_C0))
                g.I("s_cmp_eq_u32 s3, %s" % sr(S_BSRC))
                g.branch("s_cbranch_scc0 L_op_nop1")
                p1_loads()
                g.I("s_mov_b32 %s, 1" % sr(S_PASS))
                g.label("L_op_nop1", flush=False)
                g.lgkm, g.vm = sv3
            dq.extend((more or []) + late_for(i, first))
        extra = [(k, 4, [rd_OB(i, 1, k)]) for k in range(4)] + [(3, 4, [rd_OB(i, 1, 4)])] + [(6, 9, [rd_OB(i + 1, 0, qt) for qt in range(5)])]
        run_phase(g, op_phase(i), op_phase(i + 1), barrier_op=(2, bop), extra=extra, dmaq=dq, dma_gap=(3 if i % 4 == 0 else OPT.get("opgap", 4)), fb0=(10 * i) % 8,
                  fbs=FB8, lazy=lazy, capx=OPT.get("capx", 3), gap0=gpo, mix_ok=True)

    def win_top():
        g.I("s_add_u32 s3, %s, 1" % sr(S_TRIP))
        g.I("s_cmp_ge_u32 s3, %s" % sr(S_N))
        g.I("s_cselect_b32 %s, %s, -1" % (sr(S_BSRC), sr(S_C1)))
        for k in (0, 1):
            g.I("s_cselect_b32 %s, 0x%x, %s" % (sr(SA4[k]), OOB, sr(SA4[k])))
            g.I("s_cselect_b32 %s, 0x%x, %s" % (sr(SB4[k]), OOB, sr(SB4[k])))

    def window(w0, lazy=None, sig=False, tail=None, first=False):
        win_top()
        if not first:
            dq.extend(flat(pieces(w0 + 2, False)[4:] + pieces(w0 + 3, False)[:5]))
        for k in range(4):
            more = []
            if k == OPT.get("sigk", 1) and first:
                more += signal_ops(g)
            if tail and k in tail:
                more += tail[k]
            if OPT.get("opst"):
                sv2 = g.snapshot()
                g.I("s_memrealtime s[78:79]")
                g.I("s_waitcnt lgkmcnt(0)")
                g.I("v_mov_b32 v207, s78")
                g.I("s_lshl_b32 s79, s2, 2")
                g.I("s_add_u32 s79, s79, %s" % sr(S_WV))
                g.I("s_lshl_b32 s79, s79, 8")
                g.I("s_lshl_b32 s78, %s, 4" % sr(S_TRIP))
                g.I("s_add_u32 s79, s79, s78")
                g.I("s_add_u32 s79, s79, %d" % ((126 << 20) + 4 * k))
                g.I("buffer_store_dword v207, %s, %s, s79 offen" % (vr(vSIG), sr(S_O, 4)))
                g.lgkm, g.vm = sv2
            stage(w0 + k, lazy=lazy, more=more, first=first)
        for o in dq:
            do_op(g, o)
        dq.clear()
        gpo[0] = -99

    g.vm = []
    dr = drain_ops(g, range(6), pk=True)
    for o in flat(pieces(0, False) + pieces(1, False)):
        do_op(g, o)
    for i in range(100):
        g.I("v_mov_b32 v%d, 0" % i)
    for o in flat(pieces(2, False) + pieces(3, False)):
        do_op(g, o)
    for o in dr:
        if len(g.vm) == 60:
            g.wait_vm_tags({("L", 0)})
        do_op(g, o)
    assert not any(t == ("L", 0) for t, d in g.vm)
    g.barrier()
    p0 = op_phase(0)
    ra = sum((p0.reads[n](FB8[n]) for n in range(4)), [])
    rb = [rd_OB(0, 0, qt) for qt in range(5)]
    for o in [ra[0], rb[0], ra[1], rb[1], ra[2], rb[2], ra[3], rb[3], rb[4]] + ra[4:]:
        g.I(o)
    g.I("s_mov_b32 %s, 0" % sr(S_TRIP))
    window(0, first=True)
    g.I("s_mov_b32 %s, 1" % sr(S_TRIP))
    g.vm = [((t[0], t[1] - 4), d) for t, d in g.vm if t != "sig"]
    snap = g.snapshot()
    g.label("L_op_loop")
    g.I("s_cmp_lg_u32 %s, %s" % (sr(S_TRIP), sr(S_BND)))
    g.branch("s_cbranch_scc1 L_op_go")
    g.I("s_mov_b32 s78, 0")
    g.label("L_op_spin")
    g.I("v_readfirstlane_b32 s3, %s" % vr(vPOLL))
    g.I("s_and_b32 s3, s3, %s" % sr(S_M2))
    g.I("s_cmp_eq_u32 s3, %s" % sr(S_V2))
    g.branch("s_cbranch_scc1 L_op_pass")
    g.I("s_sleep %d" % OPT.get("sleep", 16))
    g.I("buffer_load_dword %s, %s, %s, %s offen sc1" % (vr(vPOLL), vr(vZ), sr(S_O, 4), sr(S_CW)))
    g.I("s_waitcnt vmcnt(0)")
    g.I("s_add_u32 s78, s78, 1")
    g.I("s_cmp_lt_u32 s78, %d" % OPT.get("spin", 1000000))
    g.branch("s_cbranch_scc1 L_op_spin")
    g.label("L_op_pass", flush=False)
    g.I("s_add_u32 %s, %s, 3" % (sr(S_BND), sr(S_BND)))
    g.I("s_lshl_b32 %s, %s, 4" % (sr(S_M2), sr(S_M2)))
    g.I("s_lshl_b32 %s, %s, 4" % (sr(S_V2), sr(S_V2)))
    g.lgkm, g.vm = [set(d) for d in snap[0]], [(t, set(d)) for t, d in snap[1]]
    g.label("L_op_go")
    window(0)
    assert not any(e[0] == "pl" for e in g.vm), "poll load must be covered by a wait inside the window"
    g.vm = [e for e in g.vm if e[0] != "sig"]
    snap2 = g.snapshot()
    assert snap[0] == snap2[0], (snap[0], snap2[0])
    assert [((t[0], t[1] + 4), d) for t, d in snap[1]] == snap2[1], (snap[1], snap2[1])
    g.I("s_add_u32 %s, %s, 1" % (sr(S_TRIP), sr(S_TRIP)))
    g.I("s_cmp_lt_u32 %s, %s" % (sr(S_TRIP), sr(S_N)))
    g.branch("s_cbranch_scc1 L_op_loop")
    g.label("L_op_done")
    g.wait_all()
    st(g, 6)
    g.I("s_cmp_eq_u32 %s, 12" % sr(S_PC))
    g.branch("s_cbranch_scc1 L_op_final")

    g.I("s_add_u32 s6, %s, %d" % (sr(S_POFF), P1_OFF))
    for n in range(25):
        if n % 4 == 0 and n:
            g.I("s_add_u32 s6, s6, 4096")
        g.I("buffer_store_dwordx4 %s, %s, %s, s6 offen offset:%d sc1" % (vr(4 * n, 4), vr(voffB), sr(S_O, 4), (n % 4) * 1024))
    g.I("s_lshl_b32 s3, 16, %s" % sr(S_FSH))
    g.I("v_mov_b32 %s, s3" % vr(vSIGD))
    g.wait_all()
    g.I("buffer_atomic_add %s, %s, %s, %s offen sc1" % (vr(vSIGD), vr(vSIG), sr(S_O, 4), sr(S_FW)))
    st(g, 7)
    g.I("s_endpgm")
    reset(g)
    g.label("L_op_final", flush=False)
    g.I("s_cmp_eq_u32 %s, 1" % sr(S_PASS))
    g.branch("s_cbranch_scc1 L_op_f2")
    g.I("s_mov_b32 s78, 0")
    g.label("L_op_f1")
    g.I("buffer_load_dword %s, %s, %s, %s offen sc1" % (vr(vFLAG), vr(vZ), sr(S_O, 4), sr(S_FW)))
    g.I("v_readfirstlane_b32 s3, %s" % vr(vFLAG))
    g.I("s_and_b32 s3, s3, %s" % sr(S_C0))
    g.I("s_cmp_eq_u32 s3, %s" % sr(S_C1))
    g.branch("s_cbranch_scc1 L_op_f1ok")
    g.I("s_sleep 8")
    g.I("s_add_u32 s78, s78, 1")
    g.I("s_cmp_lt_u32 s78, %d" % OPT.get("spin", 1000000))
    g.branch("s_cbranch_scc1 L_op_f1")
    g.label("L_op_f1ok", flush=False)
    p1_loads()
    g.label("L_op_f2")
    VO = T[1]
    g.I("v_and_b32 %s, 15, %s" % (vr(T[2]), vr(LANE)))
    g.I("v_mul_u32_u24 %s, 2560, %s" % (vr(VO), vr(T[2])))
    g.I("v_lshrrev_b32 %s, 4, %s" % (vr(T[2]), vr(LANE)))
    g.I("v_lshl_add_u32 %s, %s, 3, %s" % (vr(VO), vr(T[2]), vr(VO)))
    g.I("s_and_b32 s6, %s, 15" % sr(S_OPPAIR))
    g.I("s_mul_i32 %s, s6, 409600" % sr(S_OUTOFF))
    g.I("s_lshr_b32 s6, %s, 4" % sr(S_OPPAIR))
    g.I("s_mul_i32 s6, s6, 1280")
    g.I("s_add_u32 %s, %s, s6" % (sr(S_OUTOFF), sr(S_OUTOFF)))
    g.I("s_mul_i32 s6, %s, 320" % sr(S_NT4))
    g.I("s_add_u32 %s, %s, s6" % (sr(S_OUTOFF), sr(S_OUTOFF)))
    g.I("s_mul_i32 s6, %s, 160" % sr(S_BB))
    g.I("s_add_u32 %s, %s, s6" % (sr(S_OUTOFF), sr(S_OUTOFF)))
    g.I("s_mul_i32 s6, %s, %d" % (sr(S_QH), 5 * 40960))
    g.I("s_add_u32 %s, %s, s6" % (sr(S_OUTOFF), sr(S_OUTOFF)))
    for nt in range(5):
        for qt in range(5):
            n = nt * 5 + qt
            a, t0 = 4 * n, 120 + 4 * (n % 8)
            for r in range(4):
                g.I("v_accvgpr_read_b32 %s, a%d" % (vr(t0 + r), a + r))
            for r in (0, 2):
                g.I("v_pk_add_f32 %s, %s, %s" % (vr(a + r, 2), vr(a + r, 2), vr(t0 + r, 2)))
            g.I("s_add_u32 s3, %s, %d" % (sr(S_OUTOFF), qt * 40960))
            g.I("v_cvt_pk_bf16_f32 %s, %s, %s" % (vr(a), vr(a), vr(a + 1)))
            g.I("v_cvt_pk_bf16_f32 %s, %s, %s" % (vr(a + 1), vr(a + 2), vr(a + 3)))
            g.I("buffer_store_dwordx2 %s, %s, %s, s3 offen offset:%d" % (vr(a, 2), vr(VO), sr(S_OUT, 4), nt * 32))
    st(g, 7)
    g.label("L_exit", flush=False)
    g.I("s_endpgm")


KD4 = KD.replace("next_free_sgpr 100", "next_free_sgpr 102")


HEADER = """
"""


def main(path, only=None):
    _poll_n[0] = 0
    g = Gen()
    for line in HEADER.strip("\n").split("\n"):
        g.raw(line)
    g.raw("; @launch grid=(256,1,1) block=(256,1,1) lds=163840")
    g.raw('.amdgcn_target "amdgcn-amd-amdhsa--gfx950"')
    g.raw(".text")
    gen_kernel(g)
    txt = g.text() + KD4 % (KNAME, 512)
    open(path, "w").write(txt)
    print("written", path, "bytes", len(txt), "nops", g.nops)


if __name__ == "__main__":
    main(sys.argv[1] if len(sys.argv) > 1 else "cdna_kernels/%s.s" % NAME)
```

```python
import math
import struct
import sys

sys.path.insert(0, "gen")
from asmlib import Gen, vr, sr, ar, R, Roff, Rset

NAME = "concat_heads__mha_block_cached__gqa_block_cached__near_ridge"

X_BYTES = 16 * 160 * 640 * 2
W_BYTES = 640 * 6144 * 2
KV_BYTES = 16 * 32 * 512 * 192 * 2
O_BYTES = 32 * 192 * 10 * 1024
OUT_BYTES = 16 * 160 * 1280 * 2

SLOT = 12288
XSZ = 20480
VB = 40960
FLAG = 77824
SCALE = math.log2(math.e) / math.sqrt(192.0)
OPT = dict(stamps=False, noKV=False, rot=True)


def f32bits(x):
    return struct.unpack("<I", struct.pack("<f", x))[0]


S_X, S_W, S_K, S_V, S_O = 32, 36, 40, 44, 48
S_XOFF, S_WOFF, S_KVOFF, S_OOFF = 52, 53, 54, 55
S_WV = 56
S_T0, S_T1, S_T2, S_T3 = 58, 59, 60, 61
S_CNT, S_ROUND, S_PASS = 62, 63, 64
S_KSRC, S_VSRC = 65, 66
S_WK, S_XU = 67, 68
S_HALF, S_XD = 69, 70
S_WSRC, S_XSRC = 71, 74
S_SCALE = 72
S_ROT = 75
S_THR = 76
S_KVCUR = 77

Q = lambda ks, qt: 20 * ks + 4 * qt
G = lambda i, qt: 120 + 20 * i + 4 * qt
NM = lambda qt: 180 + 4 * qt
L = 200
FB = [("a", 240), ("a", 244), ("a", 248), ("a", 252), 208, 212]
aK = [216, 217]
aV = [218, 219, 220, 221]
aX = [222, 223]
voffKV = [224, 225, 226]
voffW = [227, 228, 229]
voffX = [230, 231, 232, 233]
voffO = 234
LANE = 235
MG = 236
T = list(range(241, 256)) + [205, 206, 207]
ACC = lambda dt, qt: ("a", 20 * dt + 4 * qt)


def mf(d, a, b, c=None):
    cs = R(d, 4) if c is None else (c if isinstance(c, str) else R(c, 4))
    return "v_mfma_f32_16x16x32_bf16 %s, %s, %s, %s" % (R(d, 4), R(a, 4), R(b, 4), cs)


def cost_of(op):
    if isinstance(op, tuple):
        return op[0]
    return 2 if op.startswith("v_exp") or op.startswith("v_rcp") or op.startswith("v_permlane") else 1


def do_op(g, op):
    if isinstance(op, tuple):
        op[1]()
    else:
        g.I(op)


def emit_group(g, mfmas, ops, pre=None):
    if pre:
        pre()
    ops = list(ops)
    n = len(mfmas)
    for k, m in enumerate(mfmas):
        g.I(m)
        used = 0
        while ops and (k == n - 1 or used + cost_of(ops[0]) <= 2):
            o = ops.pop(0)
            used += cost_of(o)
            do_op(g, o)


def take(queue, cap):
    out = []
    while queue and cost_of(queue[0]) <= cap:
        o = queue.pop(0)
        cap -= cost_of(o)
        out.append(o)
    return out


def stamp(g, i):
    if not OPT["stamps"]:
        return
    g.wait_lgkm0()
    g.I("s_memtime s[78:79]")
    g.I("s_waitcnt lgkmcnt(0)")
    g.I("s_mov_b32 %s, s78" % sr(80 + i))
    if i in (0, 9):
        g.I("s_memrealtime s[78:79]")
        g.I("s_waitcnt lgkmcnt(0)")
        g.I("s_mov_b32 %s, s78" % sr(87 if i == 0 else 88))


def stamps_out(g, nw):
    if not OPT["stamps"]:
        return
    stamp(g, 9)
    g.I("s_mul_i32 s78, s2, %d" % nw)
    g.I("s_add_u32 s78, s78, %s" % sr(S_WV))
    g.I("s_lshl_b32 s78, s78, 6")
    g.I("s_add_u32 s78, s78, %d" % (64 << 20))
    g.I("s_mov_b32 %s, 0x10000000" % sr(S_O + 2))
    g.I("v_mov_b32 %s, 0" % vr(T[0]))
    g.I("s_getreg_b32 s90, hwreg(HW_REG_HW_ID)")
    g.I("s_getreg_b32 s91, hwreg(HW_REG_XCC_ID)")
    for i in range(12):
        g.I("v_mov_b32 %s, %s" % (vr(T[1]), sr(80 + i)))
        g.I("buffer_store_dword %s, %s, %s, s78 offen offset:%d" % (vr(T[1]), vr(T[0]), sr(S_O, 4), 4 * i))


def load_ptrs(g):
    g.I("s_load_dwordx16 s[8:23], s[0:1], 0")
    g.I("s_load_dwordx4 s[24:27], s[0:1], 64")
    g.I("s_load_dwordx2 s[28:29], s[0:1], 96")
    g.I("s_load_dwordx2 s[30:31], s[0:1], 80")
    g.I("s_waitcnt lgkmcnt(0)")


def srd(g, d, lo, hi, nbytes):
    g.I("s_mov_b32 %s, %s" % (sr(d), sr(lo)))
    g.I("s_mov_b32 %s, %s" % (sr(d + 1), sr(hi)))
    g.I("s_mov_b32 %s, %d" % (sr(d + 2), nbytes))
    g.I("s_mov_b32 %s, 0x00020000" % sr(d + 3))


def srd_sel(g, d, a, b, nbytes):
    g.I("s_cselect_b32 %s, %s, %s" % (sr(d), sr(b), sr(a)))
    g.I("s_cselect_b32 %s, %s, %s" % (sr(d + 1), sr(b + 1), sr(a + 1)))
    g.I("s_mov_b32 %s, %d" % (sr(d + 2), nbytes))
    g.I("s_mov_b32 %s, 0x00020000" % sr(d + 3))


def emit_rho(g, dst_rho, dst_lc, l3, k, tmp):
    g.I("v_add_u32 %s, %d, %s" % (vr(tmp), 8 * k, vr(l3)))
    g.I("v_mul_u32_u24 %s, 43, %s" % (vr(dst_rho), vr(tmp)))
    g.I("v_lshrrev_b32 %s, 7, %s" % (vr(dst_rho), vr(dst_rho)))
    g.I("v_mul_u32_u24 %s, 3, %s" % (vr(dst_lc), vr(dst_rho)))
    g.I("v_sub_u32 %s, %s, %s" % (vr(dst_lc), vr(tmp), vr(dst_lc)))


def emit_aV(g, dst, e, lane, t0, t1, t2, base):
    g.I("v_lshrrev_b32 %s, 2, %s" % (vr(t0), vr(lane)))
    g.I("v_mul_u32_u24 %s, 384, %s" % (vr(dst), vr(t0)))
    g.I("v_and_b32 %s, 7, %s" % (vr(t0), vr(t0)))
    g.I("v_bfe_u32 %s, %s, 1, 1" % (vr(t1), vr(lane)))
    g.I("v_add_u32 %s, %d, %s" % (vr(t1), 2 * e, vr(t1)))
    g.I("v_xor_b32 %s, %s, %s" % (vr(t1), vr(t1), vr(t0)))
    g.I("v_lshl_add_u32 %s, %s, 4, %s" % (vr(dst), vr(t1), vr(dst)))
    g.I("v_and_b32 %s, 1, %s" % (vr(t2), vr(lane)))
    g.I("v_lshl_add_u32 %s, %s, 3, %s" % (vr(dst), vr(t2), vr(dst)))
    g.I("v_add_u32 %s, %d, %s" % (vr(dst), base, vr(dst)))


def emit_aRow(g, dst, e, rowbytes, lane, t0, t1):
    g.I("v_and_b32 %s, 15, %s" % (vr(t0), vr(lane)))
    g.I("v_mul_u32_u24 %s, %d, %s" % (vr(dst), rowbytes, vr(t0)))
    g.I("v_lshrrev_b32 %s, 4, %s" % (vr(t0), vr(lane)))
    g.I("v_add_u32 %s, %d, %s" % (vr(t0), 4 * e, vr(t0)))
    g.I("v_and_b32 %s, 7, %s" % (vr(t1), vr(lane)))
    g.I("v_xor_b32 %s, %s, %s" % (vr(t0), vr(t0), vr(t1)))
    g.I("v_lshl_add_u32 %s, %s, 4, %s" % (vr(dst), vr(t0), vr(dst)))


def rd_T(slot, dt, buf):
    return ["ds_read_b64_tr_b16 %s, %s offset:%d" % (R(Roff(buf, 2 * ih), 2), vr(aV[dt & 3]), slot * SLOT + ih * 6144 + (dt >> 2) * 128)
            for ih in range(2)]


def rd_K(slot, n, buf):
    kt, ks = n // 6, n % 6
    return ["ds_read_b128 %s, %s offset:%d" % (R(buf, 4), vr(aK[ks & 1]), slot * SLOT + kt * 6144 + (ks >> 1) * 128)]


def rd_B(t, qt):
    return "ds_read_b128 %s, %s offset:%d" % (vr(G(t & 1, qt), 4), vr(aX[t & 1]), ((t >> 1) & 1) * XSZ + qt * 2048)


def dma_KV(g, which, j, tag=None):
    srdr = S_K if which == "K" else S_V
    src = S_KSRC if which == "K" else S_VSRC
    base = (0 if which == "K" else VB) + (j % 3) * SLOT
    tag = tag or (which, j)
    ops = []
    for gam in range(2):
        ops.append("s_add_u32 m0, %s, %d" % (sr(S_HALF), base + 3072 * gam))
        for k in range(3):
            ops.append((1, lambda k=k: g.I("buffer_load_dwordx4 %s, %s, %s offen offset:%d nt lds" % (vr(voffKV[k]), sr(srdr, 4), sr(src), 1024 * k), tag=tag), "vmem"))
        adv = 3072 if gam == 0 else SLOT - 3072
        if OPT["noKV"]:
            adv = 3072 if gam == 0 else (-3072) & 0xffffffff
        ops.append("s_add_u32 %s, %s, %d" % (sr(src), sr(src), adv))
    return ops


def dma_W(g, t):
    base = VB + ((t + 1) % 3) * SLOT
    ops = []
    ops.append("s_add_u32 %s, %s, %s" % (sr(S_T0), sr(S_WSRC), sr(S_WK)))
    for gam in range(2):
        ops.append("s_add_u32 m0, %s, %d" % (sr(S_HALF), base + 3072 * gam))
        for k in range(3):
            ops.append((1, lambda k=k: g.I("buffer_load_dwordx4 %s, %s, %s offen offset:%d lds" % (vr(voffW[k]), sr(S_W, 4), sr(S_T0), 1024 * k), tag=("W", t)), "vmem"))
        if gam == 0:
            ops.append("s_add_u32 %s, %s, %d" % (sr(S_T0), sr(S_T0), 16 * 12288))

    def adv():
        g.I("s_add_u32 %s, %s, %d" % (sr(S_WK), sr(S_WK), 32 * 12288))
        g.I("s_cmp_ge_u32 %s, %d" % (sr(S_WK), 640 * 12288))
        g.I("s_cselect_b32 %s, 0, %s" % (sr(S_WK), sr(S_WK)))
    ops.append((3, adv))
    return ops


def dma_X(g, u):
    base = (u & 1) * XSZ
    ops = []
    ops.append("s_add_u32 %s, %s, %s" % (sr(S_T1), sr(S_XSRC), sr(S_XU)))
    for grp, n in ((0, 4), (1, 4), (2, 2)):
        ops.append("s_add_u32 m0, %s, %d" % (sr(S_XD), base + 4096 * grp))
        for k in range(n):
            ops.append((1, lambda k=k: g.I("buffer_load_dwordx4 %s, %s, %s offen offset:%d lds" % (vr(voffX[k]), sr(S_X, 4), sr(S_T1), 1024 * k), tag=("X", u)), "vmem"))
        if grp < 2:
            ops.append("s_add_u32 %s, %s, %d" % (sr(S_T1), sr(S_T1), 32 * 1280))

    def adv():
        g.I("s_add_u32 %s, %s, 128" % (sr(S_XU), sr(S_XU)))
        g.I("s_cmp_ge_u32 %s, 1280" % sr(S_XU))
        g.I("s_cselect_b32 %s, 0, %s" % (sr(S_XU), sr(S_XU)))
    ops.append((3, adv))
    return ops


def bar(g, tags):
    def f():
        g.wait_vm_tags(tags, also_lgkm0=True)
        g.barrier()
    return (2, f)


def softmax_ops(Sg0, Sg1, kt, qt):
    s = G(Sg1 if kt else Sg0, qt)
    ops = []
    for r in range(4):
        ops.append("v_exp_f32 %s, %s" % (vr(s + r), vr(s + r)))
    add = ["v_add_f32 %s, %s, %s" % (vr(L + qt), vr(L + qt), vr(s + r)) for r in range(4)]
    b = G(Sg0, qt) + 2 * kt
    c0 = "v_cvt_pk_bf16_f32 %s, %s, %s" % (vr(b), vr(s), vr(s + 1))
    c1 = "v_cvt_pk_bf16_f32 %s, %s, %s" % (vr(b + 1), vr(s + 2), vr(s + 3))
    ops += [add[0], c0, add[1], c1, add[2], add[3]]
    return ops


def interleave_sm(lists):
    out = []
    pend = []
    for ops in lists:
        ex, rest = ops[:4], ops[4:]
        while ex or pend:
            if ex:
                out.append(ex.pop(0))
            for _ in range(2):
                if pend:
                    out.append(pend.pop(0))
            if not ex:
                out += pend
                pend = []
        pend = rest
    out += pend
    return out


class Phase:
    def __init__(self, mfmas, reads):
        self.mfmas = mfmas
        self.reads = reads


def op_class(op):
    if isinstance(op, tuple):
        return op[2] if len(op) > 2 else "salu"
    if op.startswith("ds_"):
        return "ds"
    if op.startswith("buffer_"):
        return "vmem"
    if op.startswith("s_"):
        return "salu"
    return "valu"


def run_phase(g, ph, nxt, barrier_op=None, extra=None, dmaq=None, valu=None, tiles=None, dma_gap=None, fb0=0, lazy=None, capx=2, keep_dma=False, gap0=None, mid=None, fbs=None, mix_ok=False):
    n = len(ph.mfmas)
    assert n % 2 == 0
    fbs = fbs or globals()["FB"]
    NB = len(fbs)
    FB = [fbs[(fb0 + i) % NB] for i in range(NB)]
    lazy = lazy if lazy is not None else []
    dmaq = dmaq if dmaq is not None else []
    dma_gap = dma_gap or OPT.get("dma_gap", 2)
    extra = sorted(extra or [], key=lambda e: e[0])
    valu = list(valu or [])
    tiles = list(tiles or [])
    bars = dict(mid or {})
    if barrier_op is not None:
        bars[n - 4] = barrier_op
    rq, xq, vq = [], [], []
    eq, lq = [], []
    last_vm = -99 if gap0 is None else gap0[0]
    gap = 0
    burst_gap = -1

    def pop_exp():
        o, lights, dl = eq.pop(0)
        do_op(g, o)
        if lights:
            pend.extend((x, dl) for x in lights)

    pend = []
    for gi in range(n):
        if gi % 2 == 0:
            if gi in bars:
                assert not rq
                bars[gi][1]()
            else:
                g.need(Rset(FB[gi % NB], 4) | Rset(FB[(gi + 1) % NB], 4))
            assert not rq, "read queue not drained"
            for k in (4, 5):
                j = gi + k
                if j < n:
                    rq += ph.reads[j](FB[j % NB])
                elif nxt is not None:
                    rq += nxt.reads[j - n](FB[j % NB])
        while extra and extra[0][0] <= gi:
            e = extra.pop(0)
            xq += [(e[1], o) for o in e[2]]
        while valu and valu[0][0] <= gi:
            vq += valu.pop(0)[1]
        while tiles and tiles[0][0] <= gi:
            f, dl, ops = tiles.pop(0)
            eq += [(ops[0], None, dl), (ops[1], None, dl), (ops[2], None, dl), (ops[3], ops[4:], dl)]
        if hasattr(lazy, "gate"):
            lazy.gate(gi)
        mfs = ph.mfmas[gi](FB[gi % NB])
        for k, m in enumerate(mfs):
            g.I(m)
            lq += pend
            pend.clear()
            cap = capx if lazy else 2
            if k == 4 and gi % 2 == 1:
                cap -= 2 if (gi + 1) in bars else 1
            heavy = False
            hurry = (gi + 2) in bars or (gi + 1) in bars
            if rq and cap > 0 and (hurry or gap % 2 == 0 or len(rq) > (10 - gap % 10) // 2):
                do_op(g, rq.pop(0))
                cap -= 1
                heavy = True
            while cap > 0:
                if xq and cost_of(xq[0][1]) <= cap and not (heavy and op_class(xq[0][1]) in ("ds", "vmem")):
                    o = xq.pop(0)[1]
                elif dmaq and op_class(dmaq[0]) == "vmem" and (mix_ok or not heavy) and gap - last_vm >= dma_gap:
                    o = dmaq.pop(0)
                    last_vm = gap
                    burst_gap = gap
                elif dmaq and op_class(dmaq[0]) == "vmemb":
                    if burst_gap == gap:
                        break
                    o = dmaq.pop(0)
                    burst_gap = gap
                elif dmaq and op_class(dmaq[0]) != "vmem" and (cost_of(dmaq[0]) <= cap or cap >= 2):
                    o = dmaq.pop(0)
                    if isinstance(o, str) and " m0," in o:
                        last_vm = max(last_vm, gap - dma_gap + 1)
                elif eq and cap >= 2 and len(lq) < 8:
                    pop_exp()
                    cap -= 2
                    continue
                elif lq:
                    o = lq.pop(0)[0]
                elif vq and cost_of(vq[0]) <= cap and not (heavy and op_class(vq[0]) in ("ds", "vmem")):
                    o = vq.pop(0)
                elif lazy and cost_of(lazy[0]) <= cap and not (heavy and op_class(lazy[0]) in ("ds", "vmem")):
                    o = lazy.pop(0)
                else:
                    break
                if op_class(o) in ("ds", "vmem"):
                    heavy = True
                cap -= cost_of(o)
                do_op(g, o)
            if k == 4:
                while xq and xq[0][0] <= gi:
                    do_op(g, xq.pop(0)[1])
                while eq and eq[0][2] <= gi:
                    pop_exp()
                lq += pend
                pend.clear()
                while any(dl <= gi for _, dl in lq):
                    do_op(g, lq.pop(0)[0])
                if gi % 2 == 1:
                    while rq:
                        do_op(g, rq.pop(0))
                if gi == n - 1:
                    for o in vq:
                        do_op(g, o)
                    vq = []
                if (gi + 1) in bars and not keep_dma:
                    while dmaq:
                        do_op(g, dmaq.pop(0))
            gap += 1
    if gap0 is not None:
        gap0[0] = last_vm - gap
    assert not valu and not extra and not xq and not eq and not lq and not tiles and not pend


def qp_phase(t):
    slot = (t + 1) % 3
    return Phase([(lambda buf, dt=dt: [mf(ACC(dt, qt), buf, G(t & 1, qt), "0" if t == 0 else None) for qt in range(5)]) for dt in range(12)],
                 [(lambda buf, dt=dt: rd_T(slot, dt, buf)) for dt in range(12)])


def qk_groups(jk, Sg0, Sg1, zero_c):
    mfm, rds = [], []
    for n in range(12):
        kt, ks = n // 6, n % 6
        mfm.append(lambda buf, kt=kt, ks=ks: [mf(G(Sg1 if kt else Sg0, qt), buf, Q(ks, qt), (("0" if zero_c else NM(qt)) if ks == 0 else None)) for qt in range(5)])
        rds.append(lambda buf, n=n: rd_K(jk % 3, n, buf))
    return mfm, rds


def pv_groups(jv, Pg, first):
    mfm, rds = [], []
    for dt in range(12):
        mfm.append(lambda buf, dt=dt: [mf(ACC(dt, qt), buf, G(Pg, qt), "0" if first else None) for qt in range(5)])
        rds.append(lambda buf, dt=dt: rd_T(jv % 3, dt, buf))
    return mfm, rds


def att_phase(j):
    m1, r1 = qk_groups(j + 1, (j + 1) & 1, 2, False)
    m2, r2 = pv_groups(j, j & 1, j == 0)
    return Phase(m1 + m2, r1 + r2)


def head_offsets(g):
    g.I("s_lshl_b32 s4, %s, 3" % sr(S_ROUND))
    g.I("s_add_u32 s4, s4, s6")
    g.I("s_mul_i32 %s, s4, 204800" % sr(S_XOFF))
    g.I("s_lshl_b32 s5, s4, 5")
    g.I("s_add_u32 s5, s5, s3")
    g.I("s_mul_i32 %s, s5, 196608" % sr(S_KVOFF))
    g.I("s_lshl_b32 s5, s7, 4")
    g.I("s_add_u32 s5, s5, s4")
    g.I("s_mul_i32 s5, s5, 192")
    g.I("s_mul_i32 s4, s3, 6")
    g.I("s_add_u32 s5, s5, s4")
    g.I("s_mul_i32 %s, s5, 10240" % sr(S_T3))


def gen_qa(g):
    g.raw(".globl qa_kernel\n.p2align 8\n.type qa_kernel,@function\nqa_kernel:")
    g.I("s_cmp_ge_u32 s2, 512")
    g.branch("s_cbranch_scc1 L_qa_exit")
    load_ptrs(g)
    g.I("s_and_b32 s3, s2, 3")
    g.I("s_bfe_u32 s7, s2, 0x10002")
    g.I("s_lshr_b32 s4, s2, 3")
    g.I("s_and_b32 s5, s4, 7")
    g.I("s_lshr_b32 s6, s4, 3")
    g.I("s_lshl_b32 s3, s3, 3")
    g.I("s_add_u32 s3, s3, s5")
    g.I("s_add_u32 %s, s5, s6" % sr(S_ROT))
    g.I("s_cmp_ge_u32 %s, 10" % sr(S_ROT))
    g.I("s_cselect_b32 s4, 10, 0")
    g.I("s_sub_u32 %s, %s, s4" % (sr(S_ROT), sr(S_ROT)))
    if not OPT["rot"]:
        g.I("s_mov_b32 %s, 0" % sr(S_ROT))
    g.I("s_cmp_eq_u32 s7, 1")
    srd_sel(g, S_X, 8, 18, X_BYTES)
    srd_sel(g, S_K, 10, 20, KV_BYTES)
    srd_sel(g, S_V, 12, 22, KV_BYTES)
    srd_sel(g, S_W, 14, 24, W_BYTES)
    srd(g, S_O, 28, 29, O_BYTES)
    g.I("s_mov_b32 %s, 0x%08x" % (sr(S_SCALE), f32bits(SCALE)))
    g.I("s_mov_b32 %s, 0x%08x" % (sr(S_SCALE + 1), f32bits(SCALE)))
    g.I("s_mov_b32 %s, 0x%08x" % (sr(S_THR), f32bits(2.0 ** 40)))
    g.I("v_lshrrev_b32 v1, 6, v0")
    g.I("v_readfirstlane_b32 %s, v1" % sr(S_WV))
    g.I("v_and_b32 %s, 63, v0" % vr(LANE))
    stamp(g, 0)
    g.I("s_mul_i32 %s, %s, 6144" % (sr(S_HALF), sr(S_WV)))
    g.I("s_mul_i32 %s, %s, 10240" % (sr(S_XD), sr(S_WV)))
    g.I("s_mul_i32 %s, s3, 384" % sr(S_WOFF))
    g.I("s_mul_i32 %s, %s, %d" % (sr(S_WSRC), sr(S_WV), 4 * 12288))
    g.I("s_add_u32 %s, %s, %s" % (sr(S_WSRC), sr(S_WSRC), sr(S_WOFF)))
    g.I("s_mul_i32 %s, %s, %d" % (sr(S_WK), sr(S_ROT), 64 * 12288))
    g.I("s_lshl_b32 %s, %s, 7" % (sr(S_XU), sr(S_ROT)))
    g.I("s_mov_b32 %s, 0" % sr(S_ROUND))
    head_offsets(g)
    g.I("s_mul_i32 %s, %s, %d" % (sr(S_XSRC), sr(S_WV), 80 * 1280))
    g.I("s_add_u32 %s, %s, %s" % (sr(S_XSRC), sr(S_XSRC), sr(S_XOFF)))
    l3, l7 = T[5], T[6]
    g.I("v_lshrrev_b32 %s, 3, %s" % (vr(l3), vr(LANE)))
    g.I("v_and_b32 %s, 7, %s" % (vr(l7), vr(LANE)))
    for k in range(3):
        rho, lc = T[0], T[1]
        emit_rho(g, rho, lc, l3, k, T[2])
        d = voffW[k]
        g.I("v_lshrrev_b32 %s, 2, %s" % (vr(T[2]), vr(rho)))
        g.I("v_lshlrev_b32 %s, 3, %s" % (vr(T[2]), vr(T[2])))
        g.I("v_and_b32 %s, 3, %s" % (vr(T[3]), vr(rho)))
        g.I("v_add_u32 %s, %s, %s" % (vr(T[2]), vr(T[2]), vr(T[3])))
        g.I("v_mul_u32_u24 %s, 12288, %s" % (vr(d), vr(T[2])))
        g.I("v_lshl_add_u32 %s, %s, 7, %s" % (vr(d), vr(lc), vr(d)))
        g.I("v_xor_b32 %s, %s, %s" % (vr(T[2]), vr(l7), vr(rho)))
        g.I("v_lshl_add_u32 %s, %s, 4, %s" % (vr(d), vr(T[2]), vr(d)))
        if k:
            g.I("v_subrev_u32 %s, %d, %s" % (vr(d), 1024 * k, vr(d)))
        d = voffKV[k]
        g.I("v_lshlrev_b32 %s, 7, %s" % (vr(d), vr(l3)))
        g.I("v_lshl_add_u32 %s, %s, 4, %s" % (vr(d), vr(T[2]), vr(d)))
    g.I("v_mul_u32_u24 %s, 1280, %s" % (vr(voffX[0]), vr(l3)))
    g.I("v_xor_b32 %s, %s, %s" % (vr(T[2]), vr(l7), vr(l3)))
    g.I("v_lshl_add_u32 %s, %s, 4, %s" % (vr(voffX[0]), vr(T[2]), vr(voffX[0])))
    for k in range(1, 4):
        g.I("v_add_u32 %s, %d, %s" % (vr(voffX[k]), 9216 * k, vr(voffX[0])))
    for o in dma_W(g, 0) + dma_X(g, 0) + dma_W(g, 1):
        do_op(g, o)
    for e in range(4):
        emit_aV(g, aV[e], e, LANE, T[0], T[1], T[2], VB)
    for s in range(2):
        emit_aRow(g, aX[s], s, 128, LANE, T[0], T[1])
        g.I("v_add_u32 %s, %s, %s" % (vr(aX[s]), sr(S_XD), vr(aX[s])))
        emit_aRow(g, aK[s], s, 384, LANE, T[0], T[1])
    g.I("v_lshlrev_b32 %s, 4, %s" % (vr(voffO), vr(LANE)))
    g.I("s_mul_i32 s4, %s, 5120" % sr(S_WV))
    g.I("v_add_u32 %s, s4, %s" % (vr(voffO), vr(voffO)))

    g.wait_vm_tags({("W", 0), ("X", 0)}, also_lgkm0=True)
    g.barrier()
    head_vm = [t for t, d in g.vm]
    g.label("L_head")
    stamp(g, 1)
    ph = qp_phase(0)
    for qt in range(5):
        g.I(rd_B(0, qt))
    for n in range(4):
        for o in ph.reads[n](FB[n]):
            g.I(o)
    g.I("s_mov_b32 %s, %s" % (sr(S_OOFF), sr(S_T3)))
    g.I("s_add_u32 %s, %s, %s" % (sr(S_KVCUR), sr(S_KVOFF), sr(S_HALF)))
    g.I("s_mov_b32 %s, %s" % (sr(S_KSRC), sr(S_KVCUR)))
    g.I("s_mov_b32 %s, %s" % (sr(S_VSRC), sr(S_KVCUR)))
    g.I("s_mov_b32 %s, 0" % sr(S_PASS))
    for qt in range(5):
        g.I("v_mov_b32 %s, 0xff800000" % vr(MG + qt))
    dq = dma_W(g, 2) + dma_X(g, 1)
    m0_, r0_ = qk_groups(0, 0, 2, True)
    qk0 = Phase(m0_, r0_)

    def att_first_dmas():
        return [dma_KV(g, "K", 0) + dma_KV(g, "V", 0), dma_KV(g, "V", 1), dma_KV(g, "K", 1) + dma_KV(g, "K", 2)]

    for t in range(20):
        nxt = qp_phase(t + 1) if t < 19 else None
        extra = []
        if t < 19:
            extra = [(8, 11, [rd_B(t + 1, qt) for qt in range(5)])]
        late = []
        if t + 3 <= 19:
            late += dma_W(g, t + 3)
        if t % 2 == 1 and (t >> 1) + 2 <= 9:
            late += dma_X(g, (t >> 1) + 2)
        if t >= 17:
            late += att_first_dmas()[t - 17]

        def bop(t=t, late=late):
            assert not dq, "DMA queue not drained before barrier"
            g.wait_vm_tags({("W", t + 1), ("X", (t + 1) >> 1)}, also_lgkm0=True)
            g.barrier()
            dq.extend(late)
        run_phase(g, ph, nxt, barrier_op=(2, bop), extra=extra, dmaq=dq, dma_gap=2)
        ph = nxt
    for o in dq:
        do_op(g, o)
    dq.clear()
    stamp(g, 2)
    g.I("s_mov_b32 %s, %s" % (sr(S_T2), sr(S_ROUND)))
    g.I("s_mov_b32 %s, 1" % sr(S_ROUND))
    head_offsets(g)
    g.I("s_mov_b32 %s, %s" % (sr(S_ROUND), sr(S_T2)))
    g.I("s_mul_i32 %s, %s, %d" % (sr(S_XSRC), sr(S_WV), 80 * 1280))
    g.I("s_add_u32 %s, %s, %s" % (sr(S_XSRC), sr(S_XSRC), sr(S_XOFF)))
    for ks in range(6):
        for qt in range(5):
            F = Q(ks, qt)
            t0 = 242 if (qt & 1) == 0 else 120
            for r in range(4):
                g.I("v_accvgpr_read_b32 %s, %s" % (vr(t0 + r), R(Roff(ACC(2 * ks, qt), r))))
                g.I("v_accvgpr_read_b32 %s, %s" % (vr(t0 + 4 + r), R(Roff(ACC(2 * ks + 1, qt), r))))
            for r in range(0, 8, 2):
                g.I("v_pk_mul_f32 %s, %s, %s" % (vr(t0 + r, 2), vr(t0 + r, 2), sr(S_SCALE, 2)))
            for r in range(4):
                g.I("v_cvt_pk_bf16_f32 %s, %s, %s" % (vr(F + r), vr(t0 + 2 * r), vr(t0 + 2 * r + 1)))
        for qt in range(5):
            F = Q(ks, qt)
            g.I("v_permlane32_swap_b32 %s, %s" % (vr(F), vr(F + 2)))
            g.I("v_permlane32_swap_b32 %s, %s" % (vr(F + 1), vr(F + 3)))
        for qt in range(5):
            F = Q(ks, qt)
            g.I("v_permlane16_swap_b32 %s, %s" % (vr(F), vr(F + 2)))
            g.I("v_permlane16_swap_b32 %s, %s" % (vr(F + 1), vr(F + 3)))
    att_vm = [t for t, d in g.vm]
    assert not g.lgkm
    g.label("L_att")
    for qt in range(5):
        g.I("v_mov_b32 %s, 0" % vr(L + qt))
    g.wait_vm_tags({("K", 0)}, also_lgkm0=True)
    g.barrier()
    stamp(g, 3)
    for n in range(4):
        for o in qk0.reads[n](FB[n]):
            g.I(o)
    it = [att_phase(j) for j in range(15)]
    mP, rP = pv_groups(15, 1, False)
    last = Phase(mP, rP)

    def mkbar(j):
        def bop():
            assert not dq, "DMA queue not drained before barrier"
            g.wait_vm_tags({("K", j + 1), ("V", j)}, also_lgkm0=True)
            g.barrier()
        return (2, bop)

    run_phase(g, qk0, it[0], barrier_op=mkbar(0))
    for qt in range(5):
        m, t1 = T[2 * (qt & 1)], T[2 * (qt & 1) + 1]
        s0, s1 = G(0, qt), G(2, qt)
        g.I("v_max3_f32 %s, %s, %s, %s" % (vr(m), vr(s0), vr(s0 + 1), vr(s0 + 2)))
        g.I("v_max3_f32 %s, %s, %s, %s" % (vr(m), vr(m), vr(s0 + 3), vr(s1)))
        g.I("v_max3_f32 %s, %s, %s, %s" % (vr(m), vr(m), vr(s1 + 1), vr(s1 + 2)))
        g.I("v_max3_f32 %s, %s, %s, %s" % (vr(m), vr(m), vr(s1 + 3), vr(MG + qt)))
        g.I("v_mov_b32 %s, %s" % (vr(t1), vr(m)))
        g.I("v_permlane32_swap_b32 %s, %s" % (vr(m), vr(t1)))
        g.I("v_max_f32 %s, %s, %s" % (vr(m), vr(m), vr(t1)))
        g.I("v_mov_b32 %s, %s" % (vr(t1), vr(m)))
        g.I("v_permlane16_swap_b32 %s, %s" % (vr(m), vr(t1)))
        g.I("v_max_f32 %s, %s, %s" % (vr(m), vr(m), vr(t1)))
        for r in range(4):
            g.I("v_sub_f32 %s, 0, %s" % (vr(NM(qt) + r), vr(m)))
        for r in range(4):
            g.I("v_sub_f32 %s, %s, %s" % (vr(s0 + r), vr(s0 + r), vr(m)))
            g.I("v_sub_f32 %s, %s, %s" % (vr(s1 + r), vr(s1 + r), vr(m)))
    NDEF = OPT.get("ndef", 1)
    for o in interleave_sm([softmax_ops(0, 2, 0, qt) for qt in range(5)] + [softmax_ops(0, 2, 1, qt) for qt in range(5 - NDEF)]):
        g.I(o)
    stamp(g, 4)

    def iteration(j, nxt, dmas, ndef=NDEF):
        a = (j + 1) & 1
        tl = [(0, 5, softmax_ops(j & 1, 2, 1, qt)) for qt in range(5 - NDEF, 5)]
        tl += [(7, 23, softmax_ops(a, 2, 0, qt)) for qt in range(5)]
        tl += [(13, 23, softmax_ops(a, 2, 1, qt)) for qt in range(5 - ndef)]
        dq.extend(dmas)
        run_phase(g, it[j], nxt, barrier_op=mkbar(j + 1), dmaq=dq, tiles=tl)

    def std(j):
        return dma_KV(g, "V", j + 2) + dma_KV(g, "K", j + 3)

    iteration(0, it[1], std(0))
    g.I("s_mov_b32 %s, 0" % sr(S_CNT))
    snap = g.snapshot()
    g.label("L_att_loop")
    for j in range(1, 7):
        iteration(j, it[j + 1], std(j))
    snap2 = g.snapshot()
    assert snap[0] == snap2[0], (snap[0], snap2[0])
    assert [(t[0], t[1] + 6) for t, d in snap[1]] == [t for t, d in snap2[1]], (snap[1], snap2[1])
    g.I("s_add_u32 %s, %s, 1" % (sr(S_CNT), sr(S_CNT)))
    g.I("s_cmp_lt_u32 %s, 2" % sr(S_CNT))
    g.branch("s_cbranch_scc1 L_att_loop")
    g.vm = [((t[0], t[1] + 6), d) for t, d in g.vm]
    iteration(13, it[14], dma_KV(g, "V", 15))
    iteration(14, last, dma_W(g, 0), ndef=0)
    stamp(g, 5)
    fin = []
    for qt in range(5):
        l, t1 = L + qt, T[qt]
        fin.append(["v_mov_b32 %s, %s" % (vr(t1), vr(l)),
                    "v_permlane32_swap_b32 %s, %s" % (vr(l), vr(t1)),
                    "v_add_f32 %s, %s, %s" % (vr(l), vr(l), vr(t1)),
                    "v_mov_b32 %s, %s" % (vr(t1), vr(l)),
                    "v_permlane16_swap_b32 %s, %s" % (vr(l), vr(t1)),
                    "v_add_f32 %s, %s, %s" % (vr(l), vr(l), vr(t1)),
                    "v_cmp_nle_f32 %s, %s, %s" % (sr(92 + 2 * (qt & 1), 2), vr(l), sr(S_THR)),
                    ])
    finl = []
    for k in range(6):
        for qt in range(5):
            finl.append(fin[qt][k])
    finl.append("s_mov_b64 s[96:97], 0")
    for qt in range(5):
        finl.append(fin[qt][6])
        finl.append("v_rcp_f32 %s, %s" % (vr(NM(0) + 2 * qt), vr(L + qt)))
        finl.append("s_or_b64 s[96:97], s[96:97], %s" % sr(92 + 2 * (qt & 1), 2))
    for qt in range(5):
        finl.append("v_mov_b32 %s, %s" % (vr(NM(0) + 2 * qt + 1), vr(NM(0) + 2 * qt)))
    finl.append("s_or_b32 s96, s96, s97")
    finl.append("s_lshl_b32 s97, %s, 2" % sr(S_WV))
    finl.append("s_add_u32 s97, s97, %d" % FLAG)
    finl.append("v_mov_b32 %s, s96" % vr(T[0]))
    finl.append("v_mov_b32 %s, s97" % vr(T[1]))
    finl.append("ds_write_b32 %s, %s" % (vr(T[1]), vr(T[0])))
    finl.append("v_mov_b32 %s, %d" % (vr(T[1]), FLAG))
    dq.extend(dma_X(g, 0) + dma_W(g, 1))
    run_phase(g, last, None, dmaq=dq, valu=[(0, finl)], dma_gap=2)
    for o in dq:
        do_op(g, o)
    dq.clear()
    g.wait_lgkm0()
    g.barrier()
    g.I("ds_read_b64 %s, %s" % (vr(242, 2), vr(T[1])))
    g.I("v_or_b32 v242, v242, v243")
    g.I("v_readfirstlane_b32 s96, v242")
    g.I("s_cmp_eq_u32 %s, 1" % sr(S_PASS))
    g.I("s_cselect_b32 s96, 0, s96")
    g.I("s_cmp_lg_u32 s96, 0")
    g.branch("s_cbranch_scc1 L_slow")
    slow_vm = g.snapshot()
    stamp(g, 6)
    for p in range(6):
        g.I("s_add_u32 %s, %s, %d" % (sr(S_T0), sr(S_OOFF), p * 10240))
        g.I("s_add_u32 %s, %s, 4096" % (sr(S_T1), sr(S_T0)))
        for qt in range(5):
            i = p * 5 + qt
            t0 = 120 + 8 * (i % 4)
            F = 160 + 4 * (i % 5)
            for r in range(4):
                g.I("v_accvgpr_read_b32 %s, %s" % (vr(t0 + r), R(Roff(ACC(2 * p, qt), r))))
                g.I("v_accvgpr_read_b32 %s, %s" % (vr(t0 + 4 + r), R(Roff(ACC(2 * p + 1, qt), r))))
            for r in range(0, 8, 2):
                g.I("v_pk_mul_f32 %s, %s, %s" % (vr(t0 + r, 2), vr(t0 + r, 2), vr(NM(0) + 2 * qt, 2)))
            for r in range(4):
                g.I("v_cvt_pk_bf16_f32 %s, %s, %s" % (vr(F + r), vr(t0 + 2 * r), vr(t0 + 2 * r + 1)))
            if qt < 4:
                g.I("buffer_store_dwordx4 %s, %s, %s, %s offen offset:%d" % (vr(F, 4), vr(voffO), sr(S_O, 4), sr(S_T0), qt * 1024), tag="st")
            else:
                g.I("buffer_store_dwordx4 %s, %s, %s, %s offen" % (vr(F, 4), vr(voffO), sr(S_O, 4), sr(S_T1)), tag="st")
    g.I("s_cmp_eq_u32 %s, 1" % sr(S_ROUND))
    g.branch("s_cbranch_scc1 L_qa_done")
    g.I("s_mov_b32 %s, 1" % sr(S_ROUND))
    g.wait_vm_tags({("W", 0), ("X", 0)}, also_lgkm0=True)
    g.barrier()
    g.branch("s_branch L_head")
    g.label("L_qa_done", flush=False)
    stamps_out(g, 2)
    g.I("s_endpgm")

    g.hist, g.lgkm, g.vm = [], [], []
    g.label("L_slow", flush=False)
    g.I("s_mov_b32 %s, 1" % sr(S_PASS))
    g.wait_all()
    g.barrier()
    g.I("s_mul_i32 %s, %s, %d" % (sr(S_WK), sr(S_ROT), 64 * 12288))
    g.I("s_lshl_b32 %s, %s, 7" % (sr(S_XU), sr(S_ROT)))
    g.I("s_mov_b32 %s, %s" % (sr(S_KSRC), sr(S_KVCUR)))
    g.I("s_mov_b32 %s, 0" % sr(S_CNT))
    g.label("L_slow_loop")
    for o in dma_KV(g, "K", 0):
        do_op(g, o)
    g.wait_all()
    g.barrier()
    for n in range(12):
        for o in qk0.reads[n](FB[n % 6]):
            g.I(o)
        for m in qk0.mfmas[n](FB[n % 6]):
            g.I(m)
    for qt in range(5):
        for s in (G(0, qt), G(2, qt)):
            g.I("v_max3_f32 %s, %s, %s, %s" % (vr(MG + qt), vr(MG + qt), vr(s), vr(s + 1)))
            g.I("v_max3_f32 %s, %s, %s, %s" % (vr(MG + qt), vr(MG + qt), vr(s + 2), vr(s + 3)))
    g.wait_lgkm0()
    g.barrier()
    g.I("s_add_u32 %s, %s, 1" % (sr(S_CNT), sr(S_CNT)))
    g.I("s_cmp_lt_u32 %s, 16" % sr(S_CNT))
    g.branch("s_cbranch_scc1 L_slow_loop")
    g.I("s_mov_b32 %s, %s" % (sr(S_KSRC), sr(S_KVCUR)))
    g.I("s_mov_b32 %s, %s" % (sr(S_VSRC), sr(S_KVCUR)))
    for lst in att_first_dmas():
        for o in lst:
            do_op(g, o)
    now = [t for t, d in g.vm]
    assert att_vm[-len(now):] == now, (att_vm, now)
    g.branch("s_branch L_att")
    g.hist, g.lgkm, g.vm = [], [], []
    g.label("L_qa_exit", flush=False)
    g.I("s_endpgm")


def gen_op(g):
    S_WO, S_OI, S_OUT = 32, 36, 40
    S_ASRC, S_BSRC, S_ADST, S_OUTOFF = 52, 53, 54, 55
    S_RT, S_I, S_A, S_B = 58, 59, 60, 61
    NBUF, D = 6, 4
    AC = lambda nt, qt: ("a", 40 * nt + 4 * qt)
    BF = lambda b, qt: (40 * b + 4 * qt) if b < 5 else ("a", 200 + 4 * qt)
    AF = [("a", 240), ("a", 244), ("a", 248), ("a", 252), 216]
    voffA = [200, 201, 202, 203, 204]
    voffB = [205, 206, 207]
    aA = 208
    LN = 209
    Tm = [210, 211, 212, 213, 214, 215]
    g.hist, g.lgkm, g.vm = [], [], []
    g.raw(".globl op_kernel\n.p2align 8\n.type op_kernel,@function\nop_kernel:")
    g.I("s_cmp_ge_u32 s2, 256")
    g.branch("s_cbranch_scc1 L_op_exit")
    load_ptrs(g)
    g.I("s_and_b32 s3, s2, 7")
    g.I("s_lshr_b32 s4, s2, 3")
    g.I("s_and_b32 s5, s4, 7")
    g.I("s_lshr_b32 s6, s4, 3")
    g.I("s_lshl_b32 %s, s6, 1" % sr(S_RT))
    g.I("s_add_u32 %s, %s, s5" % (sr(S_RT), sr(S_RT)))
    if not OPT.get("oprot", True):
        g.I("s_mov_b32 %s, 0" % sr(S_RT))
    g.I("s_lshl_b32 s3, s3, 2")
    g.I("s_add_u32 s6, s6, s3")
    g.I("s_and_b32 s7, s6, 15")
    g.I("s_lshr_b32 s3, s6, 4")
    g.I("s_cmp_ge_u32 s6, 16")
    srd_sel(g, S_WO, 16, 26, W_BYTES)
    srd(g, S_OI, 28, 29, O_BYTES)
    srd(g, S_OUT, 30, 31, OUT_BYTES)
    g.I("v_lshrrev_b32 v1, 6, v0")
    g.I("v_readfirstlane_b32 %s, v1" % sr(S_WV))
    g.I("v_and_b32 %s, 63, v0" % vr(LN))
    g.I("s_mul_i32 %s, %s, %d" % (sr(S_ASRC), sr(S_WV), 32 * 1280))
    g.I("s_mul_i32 s4, s5, 160")
    g.I("s_add_u32 %s, %s, s4" % (sr(S_ASRC), sr(S_ASRC)))
    g.I("s_mul_i32 %s, %s, %d" % (sr(S_ADST), sr(S_WV), NBUF * 5120))
    g.I("s_mul_i32 %s, s6, %d" % (sr(S_BSRC), 192 * 10240))
    g.I("s_mul_i32 s5, %s, 10240" % sr(S_WV))
    g.I("s_add_u32 %s, %s, s5" % (sr(S_BSRC), sr(S_BSRC)))
    g.I("s_mul_i32 %s, s7, 409600" % sr(S_OUTOFF))
    g.I("s_mul_i32 s3, s3, 1280")
    g.I("s_add_u32 %s, %s, s3" % (sr(S_OUTOFF), sr(S_OUTOFF)))
    g.I("s_add_u32 %s, %s, s4" % (sr(S_OUTOFF), sr(S_OUTOFF)))
    for i in range(5):
        g.I("v_add_u32 %s, %d, %s" % (vr(Tm[0]), 64 * i, vr(LN)))
        g.I("v_mul_u32_u24 %s, 205, %s" % (vr(Tm[1]), vr(Tm[0])))
        g.I("v_lshrrev_b32 %s, 11, %s" % (vr(Tm[1]), vr(Tm[1])))
        g.I("v_mul_u32_u24 %s, 10, %s" % (vr(Tm[2]), vr(Tm[1])))
        g.I("v_sub_u32 %s, %s, %s" % (vr(Tm[2]), vr(Tm[0]), vr(Tm[2])))
        g.I("v_mul_u32_u24 %s, 1280, %s" % (vr(voffA[i]), vr(Tm[1])))
        g.I("v_lshl_add_u32 %s, %s, 4, %s" % (vr(voffA[i]), vr(Tm[2]), vr(voffA[i])))
        if 0 < i < 4:
            g.I("v_subrev_u32 %s, %d, %s" % (vr(voffA[i]), 1024 * i, vr(voffA[i])))
    g.I("v_lshlrev_b32 %s, 4, %s" % (vr(voffB[0]), vr(LN)))
    g.I("v_add_u32 %s, 4096, %s" % (vr(voffB[1]), vr(voffB[0])))
    g.I("v_add_u32 %s, 8192, %s" % (vr(voffB[2]), vr(voffB[0])))
    g.I("v_lshrrev_b32 %s, 2, %s" % (vr(Tm[0]), vr(LN)))
    g.I("v_mul_u32_u24 %s, 160, %s" % (vr(aA), vr(Tm[0])))
    g.I("v_and_b32 %s, 3, %s" % (vr(Tm[0]), vr(LN)))
    g.I("v_lshl_add_u32 %s, %s, 3, %s" % (vr(aA), vr(Tm[0]), vr(aA)))
    g.I("v_add_u32 %s, %s, %s" % (vr(aA), sr(S_ADST), vr(aA)))
    g.I("s_mov_b32 %s, 0" % sr(S_I))

    def loads(i):
        b = i % NBUF
        ops = []

        def addr():
            g.I("s_add_u32 s3, %s, %s" % (sr(S_I), sr(S_RT)))
            g.I("s_and_b32 s3, s3, 7")
            g.I("s_andn2_b32 s4, %s, 7" % sr(S_I))
            g.I("s_or_b32 s3, s3, s4")
        ops.append((4, addr))
        ops.append("s_mul_i32 %s, s3, %d" % (sr(S_A), 128 * 1280))
        ops.append("s_add_u32 %s, %s, %s" % (sr(S_A), sr(S_A), sr(S_ASRC)))
        ops.append("s_mul_i32 %s, s3, 40960" % sr(S_B))
        ops.append("s_add_u32 %s, %s, %s" % (sr(S_B), sr(S_B), sr(S_BSRC)))

        def clampf():
            g.I("s_cmp_ge_u32 %s, 48" % sr(S_I))
            g.I("s_cselect_b32 %s, 0x7f000000, %s" % (sr(S_B), sr(S_B)))
        ops.append((2, clampf))
        ops.append("s_add_u32 %s, %s, 1" % (sr(S_I), sr(S_I)))
        ops.append("s_add_u32 m0, %s, %d" % (sr(S_ADST), b * 5120))
        if OPT.get("hot"):
            ops.append("s_and_b32 %s, %s, 0x3ffff" % (sr(S_A), sr(S_A)))
            ops.append("s_and_b32 %s, %s, 0xfffff" % (sr(S_B), sr(S_B)))
        va = [voffB[0]] * 5 if OPT.get("linA") else voffA
        for k in range(0 if OPT.get("noA") else 4):
            ops.append((1, lambda k=k: g.I("buffer_load_dwordx4 %s, %s, %s offen offset:%d lds" % (vr(va[k]), sr(S_WO, 4), sr(S_A), 1024 * k), tag=("L", i)), "vmem"))
        ops.append("s_add_u32 m0, %s, %d" % (sr(S_ADST), b * 5120 + 4096))
        ops.append((1, lambda: g.I("buffer_load_dwordx4 %s, %s, %s offen lds" % (vr(voffB[1] if OPT.get("linA") else voffA[4]), sr(S_WO, 4), sr(S_A)), tag=("L", i)), "vmem"))
        for qt in range(1 if OPT.get("noB") else 10):
            ops.append((1, lambda qt=qt: g.I("buffer_load_dwordx4 %s, %s, %s, %s offen offset:%d" % (R(BF(b, qt), 4), vr(voffB[qt // 4]), sr(S_OI, 4), sr(S_B), (qt % 4) * 1024), tag=("L", i)), "vmem"))
        return ops

    def rdA(i, nt):
        return ["ds_read_b64_tr_b16 %s, %s offset:%d" % (R(Roff(AF[nt], 2 * ih), 2), vr(aA), (i % NBUF) * 5120 + ih * 2560 + nt * 32) for ih in range(2)]

    for i in range(D):
        for o in loads(i):
            do_op(g, o)
    for i in range(200):
        g.I("v_accvgpr_write_b32 a%d, 0" % i)
    g.wait_vm_tags({("L", 0)})
    for nt in range(3):
        for o in rdA(0, nt):
            g.I(o)

    def kstep(i):
        q = loads(i + D)
        gap = 0
        last_vm = -9
        for nt in range(5):
            rq = []
            if nt + 3 < 5:
                rq = rdA(i, nt + 3)
            else:
                if nt == 2:
                    rq = [(1, lambda: g.wait_vm_tags({("L", i + 1)}))]
                rq += rdA(i + 1, nt - 2)
            for qt in range(10):
                if not (OPT.get("noM") and qt % 5):
                    g.I(mf(AC(nt, qt), AF[nt], BF(i % NBUF, qt)))
                cap = 2
                heavy = False
                if rq and qt >= 1:
                    do_op(g, rq.pop(0))
                    cap -= 1
                    heavy = True
                while q and cap > 0:
                    if op_class(q[0]) == "vmem":
                        if heavy or gap - last_vm < OPT.get("opgap", 2):
                            break
                        heavy = True
                        last_vm = gap
                    elif isinstance(q[0], str) and " m0," in q[0]:
                        last_vm = max(last_vm, gap - 1)
                    o = q.pop(0)
                    cap -= cost_of(o)
                    do_op(g, o)
                gap += 1
        for o in q:
            do_op(g, o)

    g.I("s_mov_b32 s62, 0")
    snap = g.snapshot()
    g.label("L_op_loop")
    for i in range(NBUF):
        kstep(i)
    snap2 = g.snapshot()
    assert snap[0] == snap2[0]
    assert [((t[0], t[1] + NBUF), d) for t, d in snap[1]] == snap2[1]
    g.I("s_add_u32 s62, s62, 1")
    g.I("s_cmp_lt_u32 s62, %d" % (48 // NBUF))
    g.branch("s_cbranch_scc1 L_op_loop")
    g.wait_all()
    g.barrier()
    RB, VO = Tm[0], Tm[1]
    g.I("v_lshlrev_b32 %s, 4, %s" % (vr(RB), vr(LN)))
    g.I("v_add_u32 %s, 53248, %s" % (vr(Tm[3]), vr(RB)))
    g.I("v_add_u32 %s, 106496, %s" % (vr(Tm[4]), vr(RB)))
    RBs = [RB, Tm[3], Tm[4]]
    g.I("v_and_b32 %s, 15, %s" % (vr(Tm[2]), vr(LN)))
    g.I("v_mul_u32_u24 %s, 2560, %s" % (vr(VO), vr(Tm[2])))
    g.I("v_lshrrev_b32 %s, 4, %s" % (vr(Tm[2]), vr(LN)))
    g.I("v_lshl_add_u32 %s, %s, 3, %s" % (vr(VO), vr(Tm[2]), vr(VO)))
    for w in range(1, 4):
        g.I("s_cmp_eq_u32 %s, %d" % (sr(S_WV), w))
        g.branch("s_cbranch_scc1 L_op_red%d" % w)
    for w in range(4):
        if w:
            g.hist, g.lgkm, g.vm = [], [], []
            g.label("L_op_red%d" % w, flush=False)
        for tau in range(50):
            own = tau % 4
            if own == w:
                continue
            pl = (w - own - 1) % 4
            g.I("ds_write_b128 %s, %s offset:%d" % (vr(RBs[pl]), R(AC(tau % 5, tau // 5), 4), tau * 1024))
        g.wait_lgkm0()
        g.barrier()
        mine = [tau for tau in range(50) if tau % 4 == w]
        for n, tau in enumerate(mine):
            for pl in range(3):
                g.I("ds_read_b128 %s, %s offset:%d" % (vr(12 * n + 4 * pl, 4), vr(RBs[pl]), tau * 1024))
        for n, tau in enumerate(mine):
            nt, qt = tau % 5, tau // 5
            t0 = 160 + 4 * (n % 8)
            for r in range(4):
                g.I("v_accvgpr_read_b32 %s, %s" % (vr(t0 + r), R(Roff(AC(nt, qt), r))))
            for r in range(0, 4, 2):
                g.I("v_pk_add_f32 %s, %s, %s" % (vr(12 * n + r, 2), vr(12 * n + r, 2), vr(12 * n + 4 + r, 2)))
                g.I("v_pk_add_f32 %s, %s, %s" % (vr(t0 + r, 2), vr(t0 + r, 2), vr(12 * n + 8 + r, 2)))
            for r in range(0, 4, 2):
                g.I("v_pk_add_f32 %s, %s, %s" % (vr(t0 + r, 2), vr(t0 + r, 2), vr(12 * n + r, 2)))
            g.I("v_cvt_pk_bf16_f32 %s, %s, %s" % (vr(t0), vr(t0), vr(t0 + 1)))
            g.I("v_cvt_pk_bf16_f32 %s, %s, %s" % (vr(t0 + 1), vr(t0 + 2), vr(t0 + 3)))
            g.I("s_add_u32 s3, %s, %d" % (sr(S_OUTOFF), qt * 40960))
            g.I("buffer_store_dwordx2 %s, %s, %s, s3 offen offset:%d" % (vr(t0, 2), vr(VO), sr(S_OUT, 4), nt * 32))
        g.I("s_endpgm")
    g.hist, g.lgkm, g.vm = [], [], []
    g.label("L_op_exit", flush=False)
    g.I("s_endpgm")


KD = """.section .rodata,"a"
.p2align 6
.amdhsa_kernel %s
  .amdhsa_next_free_vgpr %d
  .amdhsa_next_free_sgpr 100
  .amdhsa_accum_offset 256
  .amdhsa_group_segment_fixed_size 0
  .amdhsa_kernarg_size 104
  .amdhsa_user_sgpr_count 2
  .amdhsa_user_sgpr_kernarg_segment_ptr 1
  .amdhsa_system_sgpr_workgroup_id_x 1
.end_amdhsa_kernel
"""


def main(path, only=None):
    g = Gen()
    if only in (None, "qa"):
        g.raw("; @launch kernel=qa_kernel grid=(512,1,1) block=(128,1,1) lds=81920")
    if only in (None, "op"):
        g.raw("; @launch kernel=op_kernel grid=(256,1,1) block=(256,1,1) lds=159744")
    if only == "op":
        g.raw("; @launch kernel=op_kernel grid=(256,1,1) block=(256,1,1) lds=159744")
    g.raw('.amdgcn_target "amdgcn-amd-amdhsa--gfx950"')
    g.raw(".text")
    txt_kd = ""
    if only in (None, "qa"):
        gen_qa(g)
        txt_kd += KD % ("qa_kernel", 512)
    if only in (None, "op"):
        gen_op(g)
        txt_kd += KD % ("op_kernel", 512)
    txt = g.text() + txt_kd
    open(path, "w").write(txt)
    print("written", path, "bytes", len(txt), "nops", g.nops)


if __name__ == "__main__":
    main(sys.argv[1] if len(sys.argv) > 1 else "cdna_kernels/%s.s" % NAME)
```

```python
import sys
sys.path.insert(0, "gen")
import gen2, gen13
base = dict(gen2.OPT)
for name, kw in [a.split("=", 1) for a in sys.argv[1:]]:
    gen2.OPT.clear(); gen2.OPT.update(base)
    for k in kw.split(","):
        if k:
            if k.startswith("!"): gen2.OPT[k[1:]] = False
            elif ":" in k: gen2.OPT[k.split(":")[0]] = int(k.split(":")[1])
            else: gen2.OPT[k] = True
    gen13.main("exp/%s.s" % name)
```
